```python
import torch

def _softmax(x, axis=-1):
    return torch.softmax(x, dim=axis)
def _gelu(x):
    return torch.nn.functional.gelu(x, approximate="tanh")
def _silu(x):
    return torch.nn.functional.silu(x)
def _sigmoid(x):
    return torch.sigmoid(x)
def _layernorm(x, axis=-1, eps=1e-5):
    m = x.mean(dim=axis, keepdim=True)
    v = x.var(dim=axis, keepdim=True, unbiased=False)
    return (x - m) / torch.sqrt(v + eps)
def _scatter_add(tgt, idx, src, axis=0):
    return tgt.clone().index_add_(axis, idx, src)
def _segment_sum(src, seg, n):
    out = torch.zeros((n,) + src.shape[1:], dtype=src.dtype)
    return out.index_add_(0, seg, src)
def _pad(x, pw):
    flat = tuple(v for pair in reversed(pw) for v in pair)
    return torch.nn.functional.pad(x, flat)

kernel_name = 'concat_heads__grouped_kv_mqa__spectral_gfnet__prompt'

def setup_inputs():

    _w = (lambda a: (lambda t: t.to(torch.bfloat16) if t.is_floating_point() else t)(torch.as_tensor(a)))
    def _A_setup():
        B, S, D, H = 1, 2048, 512, 32
        Dh = D // H
        return {
            "x": _w((lambda *s: torch.randn(*s, dtype=torch.bfloat16) * 0.05)(B, S, D)),
            "wq": _w((lambda *s: torch.randn(*s, dtype=torch.bfloat16) * 0.8)(D, H * Dh)),
            "wk": _w((lambda *s: torch.randn(*s, dtype=torch.bfloat16) * 0.8)(D, Dh)),
            "wv": _w((lambda *s: torch.randn(*s, dtype=torch.bfloat16) * 0.05)(D, Dh)),
            "wo": _w((lambda *s: torch.randn(*s, dtype=torch.bfloat16) * 0.05)(H * Dh, D)),
        }
    _A_in = _A_setup()

    def _B_setup():
        B, S, D = 1, 2048, 512
        Df = D // 2 + 1
        return {
            "x": _w((lambda *s: torch.randn(*s, dtype=torch.bfloat16) * 0.05)(B, S, D)),
            "w_r": _w((lambda *s: torch.randn(*s, dtype=torch.bfloat16) * 0.4)(S, Df) * 0.02),
            "w_i": _w((lambda *s: torch.randn(*s, dtype=torch.bfloat16) * 0.4)(S, Df) * 0.02),
        }
    _B_in = _B_setup()

    return {
        "A_x": _A_in["x"],
        "A_wq": _A_in["wq"],
        "A_wk": _A_in["wk"],
        "A_wv": _A_in["wv"],
        "A_wo": _A_in["wo"],
        "B_x": _B_in["x"],
        "B_w_r": _B_in["w_r"],
        "B_w_i": _B_in["w_i"],
    }

def reference(A_x, A_wq, A_wk, A_wv, A_wo, B_x, B_w_r, B_w_i):
    def _A_ref(x, wq, wk, wv, wo):
        B, S, D = x.shape
        H = 32
        Dh = D // H
        q = (lambda x, *d: x.permute(*d))((x @ wq).reshape(B, S, H, Dh), 0, 2, 1, 3)
        k = x @ wk
        v = x @ wv
        scores = torch.einsum("bhqd,bkd->bhqk", q, k) * (Dh ** -0.5)
        p = _softmax(scores, axis=-1)
        o = torch.einsum("bhqk,bkd->bhqd", p, v)
        return (lambda x, *d: x.permute(*d))(o, 0, 2, 1, 3).reshape(B, S, H * Dh) @ wo

    def _B_ref(x, w_r, w_i):
        B, S, D = x.shape
        X = (lambda x, axes=(-2,-1): torch.fft.rfft2(x.float(), dim=axes))(x, axes=(-2, -1))
        W = w_r + 1j * w_i
        X = X * W
        y = (lambda x, s, axes=(-2,-1): torch.fft.irfft2(x, s=s, dim=axes).to(torch.bfloat16))(X, (S, D), axes=(-2, -1))
        return y

    a = _A_ref(A_x, A_wq, A_wk, A_wv, A_wo)
    b = _B_ref(B_x, B_w_r, B_w_i)
    return torch.concatenate([a, b], axis=-1)
```

```python
import struct
MB = 1 << 20
QF, KF, VF, YO, OF, ZO, HO, TO = 0, 2*MB, 2*MB + 65536, 3*MB, 5*MB, 7*MB, 9*MB, 10*MB
WS_N = 11*MB
def f2u(x): return struct.unpack("<I", struct.pack("<f", x))[0]
def fl(x): return "0x%08x" % f2u(x)
class A:
    def __init__(s): s.l = []
    def __call__(s, txt):
        for x in txt.strip("\n").split("\n"):
            x = x.strip()
            if x: s.l.append(x if x.endswith(":") else "  " + x)
    def text(s): return "\n".join(s.l) + "\n"
def r(a, n): return f"v[{a}:{a+n-1}]"
def mf32(d, a, b, c): return f"v_mfma_f32_32x32x16_bf16 {r(d,16)}, {r(a,4)}, {r(b,4)}, {c if isinstance(c,str) else r(c,16)}"
def mf16(d, a, b, c): return f"v_mfma_f32_16x16x32_bf16 {r(d,4)}, {r(a,4)}, {r(b,4)}, {c if isinstance(c,str) else r(c,4)}"
def srd(o, d, p, n): o(f"s_mov_b32 s{d}, s{p}\ns_mov_b32 s{d+1}, s{p+1}\ns_mov_b32 s{d+2}, {n}\ns_mov_b32 s{d+3}, 0x00020000")
def head(o, name, nwg):
    o(f".p2align 8\n.globl {name}\n.type {name},@function\n{name}:")
    o(f"""s_cmp_ge_u32 s2, {nwg}
    s_cbranch_scc1 .Lend_{name}
    s_load_dwordx16 s[4:19], s[0:1], 0
    s_load_dwordx2 s[20:21], s[0:1], 64
    s_load_dwordx2 s[22:23], s[0:1], 80
    v_lshrrev_b32 v1, 6, v0
    v_and_b32 v0, 63, v0
    v_readfirstlane_b32 s3, v1
    s_and_b32 s40, s2, 7
    s_lshr_b32 s41, s2, 3""")
def tail(o, name): o(f".Lend_{name}:\ns_endpgm")
def desc(name, vg):
    return f""".p2align 6
.amdhsa_kernel {name}
  .amdhsa_next_free_vgpr {vg}
  .amdhsa_next_free_sgpr 102
  .amdhsa_accum_offset {vg}
  .amdhsa_group_segment_fixed_size 0
  .amdhsa_kernarg_size 88
  .amdhsa_user_sgpr_count 2
  .amdhsa_user_sgpr_kernarg_segment_ptr 1
  .amdhsa_system_sgpr_workgroup_id_x 1
.end_amdhsa_kernel
"""
def dma(o, voff, s, soff, lds_s, lds_imm):
    o(f"s_add_u32 m0, s{lds_s}, {lds_imm}\ns_nop 0\nbuffer_load_dwordx4 v{voff}, s[{s}:{s+3}], {soff} offen lds")

SLOT = 53248
def ring_gemm(o, tag, issue, nper, step, extra=None):
    for ch in range(3): issue(ch, ch)
    if extra: extra()
    for ch in range(4):
        slot = ch % 3
        n = {0: 2*nper, 1: nper, 2: nper, 3: 0}[ch]
        o(f"s_waitcnt vmcnt({n})\ns_barrier")
        if ch == 1: issue(3, 0)
        st = step(ch, slot)
        o(st[0][0])
        for ks in range(8):
            nrd = 0
            if ks < 7:
                o(st[ks+1][0]); nrd = sum(1 for x in st[ks+1][0].split("\n") if x.strip().startswith("ds_"))
            o(f"s_waitcnt lgkmcnt({nrd})")
            o(st[ks][1])
```

```python
from gen_common import *
import math
def wtr_addr(o, v, wo_order, perm):
    o(f"""v_lshrrev_b32 v2, 2, v0
    v_and_b32 v2, 3, v2
    v_lshrrev_b32 v3, 5, v0
    v_lshlrev_b32 v4, {2 if wo_order else 3}, v3
    v_add_u32 v4, v4, v2
    v_lshlrev_b32 v{v}, 7, v4
    v_lshrrev_b32 v2, 1, v2
    v_xor_b32 v2, s43, v2
    v_lshl_add_u32 v{v}, v2, 6, v{v}
    v_bfe_u32 v4, v0, 4, 1
    v_and_b32 v5, 3, v0""")
    if perm:
        o(f"""v_and_b32 v6, 1, v5
        v_lshrrev_b32 v5, 1, v5
        v_lshl_add_u32 v5, v6, 2, v5
        v_lshl_add_u32 v5, v4, 1, v5""")
    else: o("v_lshl_add_u32 v5, v4, 2, v5")
    o(f"v_lshl_add_u32 v{v}, v5, 3, v{v}")
def w_dma_addr(o, v):
    o(f"""v_lshrrev_b32 v2, 3, v0
    v_and_b32 v3, 7, v0
    v_lshrrev_b32 v4, 4, v0
    v_and_b32 v4, 1, v4
    v_lshlrev_b32 v4, 2, v4
    v_xor_b32 v3, v3, v4
    v_lshlrev_b32 v3, 4, v3
    v_lshl_add_u32 v{v}, v2, 10, v3
    s_lshl_b32 s50, s44, 7
    s_lshl_b32 s51, s3, 13
    s_add_u32 s50, s50, s51
    v_add_u32 v{v}, s50, v{v}""")
def k1(o):
    name = "k1_kernel"
    head(o, name, 256)
    o("""s_lshr_b32 s45, s41, 3
    s_and_b32 s45, s45, 1
    s_lshl_b32 s46, s40, 1
    s_add_u32 s45, s45, s46
    s_and_b32 s44, s41, 7
    s_lshr_b32 s42, s3, 1
    s_and_b32 s43, s3, 1
    s_lshl_b32 s47, s3, 10
    s_waitcnt lgkmcnt(0)""")
    srd(o, 24, 22, WS_N)
    o("s_cmp_ge_u32 s41, 16\ns_cbranch_scc1 .Lk1_y")
    srd(o, 28, 4, 2*MB); srd(o, 32, 6, 512*1024)
    o("s_and_b32 s48, s44, 1\ns_cmp_eq_u32 s48, 0\ns_cselect_b32 s36, s8, s10\ns_cselect_b32 s37, s9, s11\ns_mov_b32 s38, 16384\ns_mov_b32 s39, 0x00020000")
    o("""v_lshrrev_b32 v2, 4, v0
    s_lshl_b32 s50, s3, 2
    v_add_u32 v2, s50, v2
    v_and_b32 v3, 15, v0
    v_xor_b32 v3, v3, v2
    v_lshlrev_b32 v3, 4, v3
    v_lshl_add_u32 v10, v2, 10, v3
    s_lshl_b32 s50, s45, 17
    v_add_u32 v10, s50, v10
    v_lshlrev_b32 v12, 4, v0
    v_add_u32 v12, s47, v12""")
    w_dma_addr(o, 11)
    def issue(ch, slot):
        for m in range(8):
            o(f"s_mov_b32 s52, {m*16384 + ch*256}"); dma(o, 10, 28, "s52", 47, slot*SLOT + m*4096)
        for m in range(4):
            o(f"s_mov_b32 s52, {ch*131072 + m*32768}"); dma(o, 11, 32, "s52", 47, slot*SLOT + 32768 + m*4096)
        o(f"s_mov_b32 s52, {ch*4096}"); dma(o, 12, 36, "s52", 47, slot*SLOT + 49152)
    def extra():
        wtr_addr(o, 13, False, False)
        o("""v_and_b32 v2, 31, v0
        v_lshrrev_b32 v3, 5, v0
        v_and_b32 v4, 15, v0
        v_xor_b32 v3, v3, v4
        v_lshlrev_b32 v3, 4, v3
        v_lshl_add_u32 v14, v2, 8, v3
        s_lshl_b32 s50, s42, 14
        v_add_u32 v14, s50, v14
        v_lshrrev_b32 v3, 5, v0
        v_lshrrev_b32 v2, 2, v0
        v_and_b32 v2, 3, v2
        v_lshl_add_u32 v2, v3, 3, v2
        v_and_b32 v3, 3, v0
        v_lshlrev_b32 v3, 3, v3
        v_lshl_add_u32 v15, v2, 5, v3""")
        o("""s_lshl_b32 s50, s45, 3
        s_add_u32 s50, s50, s44
        s_cmp_ge_u32 s50, 52
        s_cbranch_scc1 .Lk1_notab
        s_cmp_lg_u32 s3, 0
        s_cbranch_scc1 .Lk1_notab
        s_mul_i32 s51, s50, 43
        s_lshr_b32 s51, s51, 9
        s_mul_i32 s52, s51, 12
        s_sub_u32 s52, s50, s52
        s_and_b32 s53, s52, 3
        s_lshr_b32 s52, s52, 2
        s_lshl_b32 s54, s51, 4
        s_and_b32 s60, s53, 1
        s_lshr_b32 s61, s53, 1
        s_cmp_eq_u32 s51, 4
        s_cbranch_scc1 .Lk1_t32
        s_cmp_eq_u32 s52, 0
        s_cbranch_scc0 .Lk1_ttw""")
        o(f"s_lshl_b32 s55, s60, 5\ns_mov_b32 s56, 3\ns_mov_b32 s57, 4\ns_mov_b32 s58, {fl(1/64)}\ns_mov_b32 s59, s61\ns_mov_b32 s62, 1\ns_branch .Lk1_tgo")
        o(f".Lk1_t32:\ns_lshl_b32 s54, s60, 4\ns_mov_b32 s55, 0\ns_mov_b32 s56, 2\ns_mov_b32 s57, 16\ns_mov_b32 s58, {fl(1/32)}\ns_mov_b32 s59, s61\ns_mov_b32 s62, 1\ns_branch .Lk1_tgo")
        o(f""".Lk1_ttw:
        s_lshl_b32 s55, s61, 4
        s_mov_b32 s63, s54
        s_cmp_eq_u32 s52, 2
        s_cselect_b32 s54, s55, s63
        s_cselect_b32 s55, s63, s55
        s_mov_b32 s56, 2\ns_mov_b32 s57, 4\ns_mov_b32 s58, {fl(1/2048)}\ns_mov_b32 s59, s60\ns_mov_b32 s62, 0
        .Lk1_tgo:
        s_cmp_eq_u32 s59, 0
        s_cselect_b32 s59, 0, {fl(-0.25)}
        v_and_b32 v2, 15, v0
        v_add_u32 v2, s54, v2
        v_cvt_f32_u32 v2, v2
        v_mul_f32 v2, s58, v2
        v_lshrrev_b32 v3, 4, v0
        v_lshlrev_b32 v3, s56, v3
        v_add_u32 v3, s55, v3
        v_add_u32 v4, s57, v3
        v_mov_b32 v5, s59""")
        for e in range(8):
            o(f"v_add_u32 v{20+e}, {e&3}, v{3+(e>>2)}\nv_cvt_f32_u32 v{20+e}, v{20+e}\nv_fma_f32 v{20+e}, v{20+e}, v2, v5\nv_cos_f32 v{20+e}, v{20+e}")
        o("s_cmp_eq_u32 s62, 0\ns_cbranch_scc1 .Lk1_tst")
        for e in range(4): o(f"v_cvt_pk_bf16_f32 v{20+e}, v{20+2*e}, v{21+2*e}")
        o(f""".Lk1_tst:
        s_lshl_b32 s50, s50, 10
        s_add_u32 s50, s50, {TO}
        v_lshlrev_b32 v2, 4, v0
        buffer_store_dwordx4 v[20:23], v2, s[24:27], s50 offen
        s_waitcnt vmcnt(0)
        .Lk1_notab:""")
        o("""s_lshr_b32 s50, s44, 2
        s_cmp_lg_u32 s50, s42
        s_cbranch_scc1 .Lk1_v0
        s_cmp_lg_u32 s48, s43
        s_cbranch_scc1 .Lk1_v0
        s_bfe_u32 s50, s44, 0x10001
        s_lshl_b32 s50, s50, 1
        s_add_u32 s50, s50, s48""")
    def mkstep(var):
        def step(ch, slot):
            o(f"v_add_u32 v16, {slot*SLOT}, v14\nv_add_u32 v17, {slot*SLOT+32768}, v13\nv_add_u32 v18, {slot*SLOT+49152}, v15")
            st = []
            for ks in range(8):
                F = 80 + 16*(ks & 1)
                rd = f"v_xor_b32 v19, {ks*32}, v16\n" + "".join(f"ds_read_b64_tr_b16 {r(F+2*e,2)}, v17 offset:{(16*ks+4*e)*128}\n" for e in range(2))
                rd += f"ds_read_b128 {r(F+4,4)}, v19\nds_read_b128 {r(F+8,4)}, v19 offset:8192\n"
                c0 = ch == 0 and ks == 0
                mm = mf32(32, F, F+4, "0" if c0 else 32) + "\n" + mf32(48, F, F+8, "0" if c0 else 48)
                if var is not None:
                    rd += "".join(f"ds_read_b64_tr_b16 {r(F+12+2*e,2)}, v18 offset:{(16*ks+4*e)*32}\n" for e in range(2))
                    X = F+4+4*(var >> 1)
                    mm += "\n" + (mf32(64, X, F+12, "0" if c0 else 64) if var & 1 else mf32(64, F+12, X, "0" if c0 else 64))
                st.append((rd, mm))
            return st
        return step
    for ch in range(3): issue(ch, ch)
    extra()
    for v in range(4): o(f"s_cmp_eq_u32 s50, {v}\ns_cbranch_scc1 .Lk1_kv{v}")
    for var in (None, 0, 1, 2, 3):
        o(".Lk1_v0:" if var is None else f".Lk1_kv{var}:")
        ring_gemm(o, "q", (lambda ch, sl: issue(ch, sl) if ch == 3 else None), 13, mkstep(var))
        if var is not None:
            o(f"""s_nop 15
            s_lshl_b32 s50, s45, 2
            s_lshr_b32 s51, s44, 1
            s_add_u32 s50, s50, s51
            s_lshl_b32 s50, s50, 10
            s_add_u32 s50, s50, {VF if var & 1 else KF}""")
            for j in range(8 if var & 1 else 4): o(f"v_cvt_pk_bf16_f32 v{64+j}, v{64+2*j}, v{65+2*j}")
            if var & 1:
                o("""v_bfe_u32 v2, v0, 4, 1
                v_cmp_eq_u32 vcc, 1, v2
                v_lshlrev_b32 v2, 9, v2
                v_lshrrev_b32 v3, 5, v0
                v_lshl_add_u32 v2, v3, 8, v2
                v_and_b32 v3, 15, v0
                v_lshl_add_u32 v2, v3, 4, v2""")
                for j in range(4): o(f"v_cndmask_b32 v{64+j}, v{64+j}, v{68+j}, vcc")
            else: o("v_lshlrev_b32 v2, 4, v0")
            o("buffer_store_dwordx4 v[64:67], v2, s[24:27], s50 offen")
        if var != 3: o("s_branch .Lk1_qepi")
    o(f""".Lk1_qepi:
    s_nop 15
    s_mov_b32 s52, {fl(0.25*math.log2(math.e))}
    s_lshl_b32 s50, s45, 2
    s_lshl_b32 s51, s42, 1
    s_add_u32 s50, s50, s51
    s_lshl_b32 s50, s50, 5
    s_lshl_b32 s51, s44, 2
    s_add_u32 s50, s50, s51
    s_lshl_b32 s51, s43, 1
    s_add_u32 s50, s50, s51
    s_lshl_b32 s50, s50, 10
    s_add_u32 s51, s50, 32768
    v_lshlrev_b32 v2, 4, v0""")
    for st in range(2):
        for j in range(16): o(f"v_mul_f32 v{32+16*st+j}, s52, v{32+16*st+j}")
        for j in range(8): o(f"v_cvt_pk_bf16_f32 v{80+8*st+j}, v{32+16*st+2*j}, v{33+16*st+2*j}")
        for hh in range(2): o(f"buffer_store_dwordx4 {r(80+8*st+4*hh,4)}, v2, s[24:27], s{50+st} offen offset:{1024*hh}")
    o(f"s_branch .Lend_{name}")
    o(".Lk1_y:")
    srd(o, 28, 14, 2*MB)
    o("""s_lshr_b32 s50, s45, 3
    s_and_b32 s51, s45, 7
    s_lshl_b32 s53, s50, 10
    s_lshl_b32 s54, s42, 9
    s_add_u32 s53, s53, s54
    s_lshl_b32 s54, s43, 7
    s_add_u32 s53, s53, s54
    s_lshl_b32 s54, s51, 2
    s_add_u32 s53, s53, s54
    s_lshl_b32 s53, s53, 10
    v_lshlrev_b32 v9, 4, v0
    v_add_u32 v10, s53, v9
    s_lshl_b32 s54, s43, 1
    s_add_u32 s54, s54, s42
    s_mul_i32 s55, s54, 8448""")
    for p in range(4):
        for q in range(8):
            o(f"s_mov_b32 s52, {(256*(q>>2) + 32*(q&3) + p)*1024}"); dma(o, 10, 28, "s52", 55, (32*p+q)*1056)
    o(f"""s_lshl_b32 s56, s45, 3
    s_add_u32 s56, s56, s44
    s_lshl_b32 s56, s56, 2
    s_add_u32 s56, s56, s3
    s_lshr_b32 s57, s56, 5
    s_and_b32 s58, s56, 31
    v_and_b32 v2, 3, v0
    v_bfe_u32 v3, v0, 2, 1
    v_lshl_add_u32 v2, v3, 4, v2
    v_bfe_u32 v3, v0, 3, 2
    v_lshl_add_u32 v2, v3, 2, v2
    s_lshl_b32 s57, s57, 5
    v_add_u32 v2, s57, v2
    v_cvt_f32_u32 v2, v2
    v_mul_f32 v2, {fl(1/512)}, v2
    v_lshrrev_b32 v3, 5, v0
    v_lshlrev_b32 v3, 2, v3
    s_lshl_b32 s59, s58, 3
    v_add_u32 v3, s59, v3
    v_cmp_eq_u32 vcc, 0, v3
    v_mov_b32 v6, {fl(2.0**-19)}
    v_mov_b32 v7, {fl(2.0**-20)}
    v_cndmask_b32 v7, v6, v7, vcc""")
    for jj in range(4):
        o(f"v_add_u32 v4, {jj}, v3\nv_cvt_f32_u32 v4, v4\nv_mul_f32 v{20+2*jj}, v4, v2\nv_add_f32 v{21+2*jj}, 0x3e800000, v{20+2*jj}")
        if jj == 0: o(f"v_mul_f32 v5, {fl(256.0)}, v2\nv_cndmask_b32 v21, v21, v5, vcc")
    for j in range(8): o(f"v_cos_f32 v{20+j}, v{20+j}")
    for j in range(8): o(f"v_mul_f32 v{20+j}, v{7 if j < 2 else 6}, v{20+j}")
    for j in range(4): o(f"v_cvt_pk_bf16_f32 v{28+j}, v{20+2*j}, v{21+2*j}")
    o(f"s_lshl_b32 s56, s56, 10\ns_add_u32 s56, s56, {HO}\nbuffer_store_dwordx4 v[28:31], v9, s[24:27], s56 offen")
    o(f"""s_lshl_b32 s56, s44, 6
    s_lshl_b32 s57, s3, 4
    s_add_u32 s56, s56, s57
    v_and_b32 v2, 15, v0
    v_add_u32 v12, s56, v2
    v_lshrrev_b32 v3, 1, v12
    v_and_b32 v4, 1, v12
    v_cmp_eq_u32 vcc, 1, v12
    v_mov_b32 v5, 0x100
    v_and_b32 v6, 1, v3
    v_cndmask_b32 v3, v3, v5, vcc
    v_cndmask_b32 v4, v4, 0, vcc
    v_mov_b32 v7, 0x80008000
    v_mul_lo_u32 v7, v7, v6
    v_cvt_f32_u32 v3, v3
    v_mul_f32 v3, {fl(1/512)}, v3
    v_cvt_f32_u32 v4, v4
    v_mul_f32 v4, 0x3e800000, v4
    v_lshrrev_b32 v5, 4, v0
    v_lshlrev_b32 v6, 3, v5
    v_cvt_f32_u32 v6, v6
    v_fma_f32 v4, v6, v3, v4
    v_mul_u32_u24 v14, 1056, v2
    v_lshl_add_u32 v14, v5, 4, v14
    v_lshlrev_b32 v12, 12, v12
    v_lshl_add_u32 v12, v5, 4, v12
    s_lshl_b32 s50, s50, 11
    s_lshl_b32 s51, s51, 8
    s_add_u32 s50, s50, s51
    s_add_u32 s50, s50, {YO}""")
    for ks in range(8):
        for j in range(8): o(f"v_fmamk_f32 v{20+j}, v3, {fl(32.0*ks+j)}, v4")
        for j in range(8): o(f"v_cos_f32 v{20+j}, v{20+j}")
        for j in range(4): o(f"v_cvt_pk_bf16_f32 v{64+4*ks+j}, v{20+2*j}, v{21+2*j}")
        for j in range(4): o(f"v_xor_b32 v{96+4*ks+j}, v7, v{64+4*ks+j}")
    for p in range(4):
        o(f"s_waitcnt vmcnt({25-8*p})\ns_barrier\nv_add_u32 v15, {32*p*1056}, v14")
        def rd(ks): return "".join(f"ds_read_b128 {r(128+8*(ks&3)+4*a,4)}, v15 offset:{a*16*1056+ks*64}\n" for a in range(2))
        for ks in range(3): o(rd(ks))
        for ks in range(16):
            if ks+3 < 16: o(rd(ks+3))
            o(f"s_waitcnt lgkmcnt({2*min(3, 15-ks)})")
            for a in range(2): o(mf16(32+8*p+4*a, 128+8*(ks&3)+4*a, 64+4*ks, "0" if ks == 0 else 32+8*p+4*a))
    o("s_nop 7")
    for p in range(4):
        for j in range(4): o(f"v_cvt_pk_bf16_f32 v{64+4*p+j}, v{32+8*p+2*j}, v{33+8*p+2*j}")
        o(f"buffer_store_dwordx4 {r(64+4*p,4)}, v12, s[24:27], s50 offen offset:{64*p}")
    tail(o, name)
    return name, 160
```

```python
from gen_common import *
EX = 131072
K2_LDS = EX + 2*9216
TB = 8
S0, S1, OA, CC, P0, KB, VB, QR = 16, 32, 48, 64, 80, 96, 104, 120
def fft(o):
    X, T64, TW1, TW2, T32, W, NS64, NS32, D = 16, 48, 64, 80, 96, 112, 128, 136, 144
    srd(o, 28, 16, 2048*257*2); srd(o, 32, 18, 2048*257*2)
    o(f"""v_and_b32 v2, 15, v0
    v_lshrrev_b32 v3, 4, v0
    v_lshlrev_b32 v5, 6, v2
    v_lshl_add_u32 v5, v3, 4, v5
    v_lshlrev_b32 v6, 4, v0
    s_mul_i32 s50, s60, 12288
    s_add_u32 s50, s50, {TO}
    s_add_u32 s51, s50, 4096
    s_add_u32 s52, s50, 8192
    s_mov_b32 s53, {TO+49152}
    s_lshl_b32 s54, s60, 4
    v_add_u32 v7, s54, v2
    v_lshl_add_u32 v8, v3, 8, v7
    v_mul_u32_u24 v8, 514, v8
    s_lshl_b32 s55, s61, 1
    v_add_u32 v8, s55, v8""")
    for p in range(2):
        for t in range(2):
            for ks in range(2): o(f"buffer_load_dwordx4 {r(X+16*p+8*t+4*ks,4)}, v5, s[24:27], s{62+p} offen offset:{2048*ks+1024*t}")
    for i, (b, s) in enumerate(((T64, 50), (TW1, 51), (T32, 53), (TW2, 52))):
        for j in range(4): o(f"buffer_load_dwordx4 {r(b+4*j,4)}, v6, s[24:27], s{s} offen offset:{1024*j}")
    for j in range(16): o(f"v_mov_b32 v{W+j}, 0")
    for t in range(2):
        for i in range(4):
            o(f"s_mov_b32 s56, {32896*(16*t+i)}")
            for p in range(2): o(f"buffer_load_short_d16_hi v{W+8*p+4*t+i}, v8, s[{28+4*p}:{31+4*p}], s56 offen")
    o(f"""v_mul_u32_u24 v9, 144, v2
    v_lshl_add_u32 v9, v3, 3, v9
    s_lshl_b32 s55, s60, 5
    s_add_u32 s55, s55, s66
    v_add_u32 v9, s55, v9
    v_lshrrev_b32 v10, 2, v2
    v_lshlrev_b32 v10, 3, v10
    v_and_b32 v11, 3, v2
    v_add_u32 v10, v10, v11
    v_mul_u32_u24 v10, 144, v10
    v_lshl_add_u32 v10, v3, 4, v10
    v_add_u32 v10, s66, v10
    v_lshlrev_b32 v11, 6, v7
    v_lshl_add_u32 v11, v3, 4, v11
    s_cmp_lt_u32 s3, 4
    s_cbranch_scc1 .Lk2_nw
    s_waitcnt vmcnt(0)
    .Lk2_nw:
    s_barrier
    s_waitcnt vmcnt(28)""")
    for j in range(8): o(f"v_xor_b32 v{NS64+j}, 0x80008000, v{T64+8+j}")
    R_, I_ = D, D+8
    def cplx(dr, di, steps, dataA):
        out = []
        for n, (xr, xi, C, Sr, Si) in enumerate(steps):
            f = (lambda d, x, k, c: mf16(d, x, k, c)) if dataA else (lambda d, x, k, c: mf16(d, k, x, c))
            out += [f(dr, xr, C, "0" if n == 0 else dr), f(di, xi, C, "0" if n == 0 else di), f(dr, xi, Sr, dr), f(di, xr, Si, di)]
        return out
    def inter(a, b):
        for x, y in zip(a, b): o(x); o(y)
    def cmul(c, s, sign, dst):
        for j in range(8): o(f"v_mul_f32 v{dst+j}, v{R_+j}, v{c(j)}\nv_mul_f32 v{dst+8+j}, v{I_+j}, v{c(j)}")
        for j in range(8):
            if sign > 0: o(f"v_fma_f32 v{dst+j}, -v{I_+j}, v{s(j)}, v{dst+j}\nv_fmac_f32 v{dst+8+j}, v{R_+j}, v{s(j)}")
            else: o(f"v_fmac_f32 v{dst+j}, v{I_+j}, v{s(j)}\nv_fma_f32 v{dst+8+j}, -v{R_+j}, v{s(j)}, v{dst+8+j}")
    def pack(src, dst):
        for j in range(8): o(f"v_cvt_pk_bf16_f32 v{dst+j}, v{src+2*j}, v{src+2*j+1}")
    o("s_nop 0")
    inter(*[cplx(R_+4*t, I_+4*t, [(X+8*t+4*k, X+16+8*t+4*k, T64+4*k, T64+8+4*k, NS64+4*k) for k in range(2)], True) for t in range(2)])
    o("s_waitcnt vmcnt(20)")
    for j in range(8): o(f"v_xor_b32 v{NS32+j}, 0x80008000, v{T32+8+j}")
    twc = lambda b: (lambda j: b + 8*(j >> 2) + (j & 3)); tws = lambda b: (lambda j: b + 8*(j >> 2) + 4 + (j & 3))
    cmul(twc(TW1), tws(TW1), -1, X); pack(X, X+16); o("s_nop 1")
    inter(*[cplx(R_+4*t, I_+4*t, [(X+16, X+20, T32+4*t, T32+8+4*t, NS32+4*t)], False) for t in range(2)])
    o("s_waitcnt vmcnt(0)\ns_nop 7")
    cmul(lambda j: W+j, lambda j: W+8+j, +1, X); pack(X, X+16); o("s_nop 1")
    inter(*[cplx(R_+4*t, I_+4*t, [(X+16, X+20, T32+4*t, NS32+4*t, T32+8+4*t)], True) for t in range(2)])
    o("s_nop 7")
    cmul(twc(TW2), tws(TW2), +1, X); pack(X, X+16)
    for p in range(2):
        for t in range(2): o(f"ds_write_b64 v9, {r(X+16+4*p+2*t,2)} offset:{p*4608+t*16*144}")
    o("s_waitcnt lgkmcnt(0)\ns_barrier")
    for t in range(2):
        for p in range(2):
            for ks in range(2): o(f"ds_read_b128 {r(X+16*p+8*t+4*ks,4)}, v10 offset:{p*4608+t*4*144+ks*64}")
    o("s_waitcnt lgkmcnt(0)")
    inter(*[cplx(R_+4*t, I_+4*t, [(X+8*t+4*k, X+16+8*t+4*k, T64+4*k, NS64+4*k, T64+8+4*k) for k in range(2)], True) for t in range(2)])
    o("s_nop 7")
    pack(D, W)
    for p in range(2): o(f"buffer_store_dwordx4 {r(W+4*p,4)}, v11, s[24:27], s{64+p} offen")

def k2(o):
    name = "k2_kernel"
    head(o, name, 256)
    o("s_waitcnt lgkmcnt(0)")
    srd(o, 24, 22, WS_N)
    o(f"""s_lshl_b32 s44, s40, 8
    s_lshl_b32 s45, s41, 3
    s_add_u32 s44, s44, s45
    s_add_u32 s44, s44, s3
    s_lshl_b32 s44, s44, 10
    v_lshlrev_b32 v1, 4, v0
    s_mov_b32 s46, 0xffff
    s_mov_b32 s47, 0xffff
    s_mov_b32 s48, 0
    s_mov_b32 s49, 0
    buffer_load_dwordx4 {r(12,4)}, v1, s[24:27], s44 offen
    s_cmp_lt_u32 s3, 4
    s_cbranch_scc1 .Lk2_fft
    s_sub_u32 s50, s3, 4
    s_lshl_b32 s50, s50, 10""")
    for g in range(16):
        for kv in range(2):
            o(f"s_add_u32 s52, s50, {KF + kv*65536 + g*4096}"); dma(o, 1, 24, "s52", 50, kv*65536 + g*4096)
    o(f"""s_cmp_eq_u32 s2, 0
    s_cbranch_scc1 .Lk2_fft
    s_mov_b32 s49, 1
    s_waitcnt vmcnt({32 - 2*((TB+2+3)//4)})
    s_barrier
    s_branch .Lk2_att
    .Lk2_fft:
    s_and_b32 s60, s3, 3
    s_lshl_b32 s61, s40, 5
    s_add_u32 s61, s61, s41
    s_lshr_b32 s50, s3, 2
    s_mul_i32 s66, s50, 9216
    s_add_u32 s66, s66, {EX}
    s_lshl_b32 s51, s61, 1
    s_add_u32 s51, s51, s50
    s_lshl_b32 s51, s51, 12
    s_add_u32 s62, s51, {YO}
    s_add_u32 s63, s51, {YO+4096}
    s_add_u32 s64, s51, {ZO}
    s_add_u32 s65, s51, {ZO+4096}
    s_lshl_b32 s50, s50, 8
    s_add_u32 s61, s61, s50
    s_cmp_eq_u32 s2, 0
    s_cselect_b32 s63, {WS_N}, s63
    s_cselect_b32 s65, {WS_N}, s65""")
    fft(o)
    o(".Lk2_att:")
    for j in range(4): o(f"v_mov_b32 v{QR+j}, v{12+j}")
    for j in range(16): o(f"v_mov_b32 v{CC+j}, 0\nv_mov_b32 v{VB+j}, 0x3f803f80")
    o("""v_lshrrev_b32 v3, 5, v0
    v_and_b32 v4, 15, v0
    v_lshlrev_b32 v3, 8, v3
    v_lshl_add_u32 v2, v4, 4, v3
    v_add_u32 v2, 0x10000, v2
    .Lk2_main:""")
    o(f"ds_read_b128 {r(KB,4)}, v1\nds_read_b128 {r(KB+4,4)}, v1 offset:1024\ns_waitcnt lgkmcnt(1)")
    o(mf32(S0, KB, QR, CC)); o("s_waitcnt lgkmcnt(0)\ns_nop 10")
    for T in range(64):
        S, Sn, P, Pp = (S0, S1, P0, P0+8) if T % 2 == 0 else (S1, S0, P0+8, P0)
        if T == TB: o("s_cmp_eq_u32 s49, 0\ns_cbranch_scc1 .Lk2_nb\ns_waitcnt vmcnt(0)\ns_barrier\ns_mov_b32 s49, 0\n.Lk2_nb:")
        if T < 63: o(mf32(Sn, KB+4*((T+1) & 1), QR, CC))
        if T < 62: o(f"ds_read_b128 {r(KB+4*(T&1),4)}, v1 offset:{(T+2)*1024}")
        o(f"s_mov_b64 exec, s[46:47]\nds_read_b128 {r(VB+8*(T&1),4)}, v2 offset:{T*1024}\nds_read_b128 {r(VB+8*(T&1)+4,4)}, v2 offset:{T*1024+512}\ns_mov_b64 exec, -1")
        va = []
        for j in range(8):
            va += [f"v_exp_f32 v{S+2*j}, v{S+2*j}", f"v_exp_f32 v{S+2*j+1}, v{S+2*j+1}"]
            if j > 0: va += [f"v_cvt_pk_bf16_f32 v{P+j-1}, v{S+2*j-2}, v{S+2*j-1}"]
        va += ["s_waitcnt lgkmcnt(0)", f"v_cvt_pk_bf16_f32 v{P+7}, v{S+14}, v{S+15}"]
        Vp = VB+8*((T-1) & 1)
        for i, x in enumerate(va):
            if T > 0 and i == 8: o(mf32(OA, Vp, Pp, "0" if T == 1 else OA))
            if T > 0 and i == 16: o(mf32(OA, Vp+4, Pp+4, OA))
            o(x)
    o("s_nop 1"); o(mf32(OA, VB+8, P0+8, OA)); o(mf32(OA, VB+12, P0+12, OA)); o("s_nop 11")
    o(f"""s_cmp_lg_u32 s48, 0
    s_cbranch_scc1 .Lk2_fin
    v_add_f32 v3, abs(v{OA}), abs(v{OA+1})""")
    for j in range(2, 8): o(f"v_add_f32 v3, v3, abs(v{OA+j})")
    o(f"""s_mov_b32 s50, {fl(2.0**-80)}
    s_mov_b32 s51, {fl(2.0**80)}
    s_mov_b32 s52, {fl(2.0**120)}
    v_cmp_nle_f32 s[54:55], s50, v{OA+8}
    v_cmp_nge_f32 s[56:57], s51, v{OA+8}
    v_cmp_nge_f32 s[58:59], s52, v3
    s_nop 3
    s_or_b64 s[54:55], s[54:55], s[56:57]
    s_or_b64 s[54:55], s[54:55], s[58:59]
    s_cbranch_scc0 .Lk2_fin
    s_mov_b32 s48, 1
    s_mov_b32 s50, 64
    v_mov_b32 v3, 0xff800000
    v_mov_b32 v4, v1
    .Lk2_mx:
    ds_read_b128 {r(KB,4)}, v4
    v_add_u32 v4, 1024, v4
    s_waitcnt lgkmcnt(0)""")
    o(mf32(S0, KB, QR, "0")); o("s_nop 11")
    for j in range(8): o(f"v_max3_f32 v3, v3, v{S0+2*j}, v{S0+2*j+1}")
    o(f"""s_sub_u32 s50, s50, 1
    s_cmp_lg_u32 s50, 0
    s_cbranch_scc1 .Lk2_mx
    v_xor_b32 v4, 32, v0
    v_lshlrev_b32 v4, 2, v4
    ds_bpermute_b32 v5, v4, v3
    s_waitcnt lgkmcnt(0)
    v_max_f32 v3, v3, v5""")
    for j in range(16): o(f"v_sub_f32 v{CC+j}, 0, v3")
    o(f"""s_branch .Lk2_main
    .Lk2_fin:
    v_rcp_f32 v3, v{OA+8}
    s_add_u32 s44, s44, {OF}""")
    for j in range(8): o(f"v_mul_f32 v{OA+j}, v3, v{OA+j}")
    for j in range(4): o(f"v_cvt_pk_bf16_f32 v{4+j}, v{OA+2*j}, v{OA+2*j+1}")
    o("buffer_store_dwordx4 v[4:7], v1, s[24:27], s44 offen")
    tail(o, name)
    return name, 160
```

```python
from gen_common import *
from gen_k1 import wtr_addr, w_dma_addr
def k3(o):
    name = "k3_kernel"
    head(o, name, 256)
    o("""s_lshr_b32 s45, s41, 3
    s_and_b32 s45, s45, 1
    s_lshl_b32 s46, s40, 1
    s_add_u32 s45, s45, s46
    s_and_b32 s44, s41, 7
    s_lshr_b32 s42, s3, 1
    s_and_b32 s43, s3, 1
    s_lshl_b32 s47, s3, 10
    v_lshlrev_b32 v9, 4, v0
    s_waitcnt lgkmcnt(0)""")
    srd(o, 24, 22, WS_N); srd(o, 28, 20, 4*MB)
    o("s_cmp_ge_u32 s41, 16\ns_cbranch_scc1 .Lk3_z")
    def mm(F, c0): return mf32(32, F, F+4, "0" if c0 else 32) + "\n" + mf32(48, F, F+8, "0" if c0 else 48)
    srd(o, 32, 12, 512*1024)
    o("s_lshl_b32 s50, s45, 17\ns_add_u32 s50, s50, s47\nv_add_u32 v10, s50, v9")
    w_dma_addr(o, 11)
    def issue(ch, slot):
        for m in range(8):
            o(f"s_mov_b32 s52, {OF + (m>>1)*32768 + ch*8192 + (m&1)*4096}"); dma(o, 10, 24, "s52", 47, slot*SLOT + m*4096)
        for m in range(4):
            o(f"s_mov_b32 s52, {ch*131072 + m*32768}"); dma(o, 11, 32, "s52", 47, slot*SLOT + 32768 + m*4096)
    def extra():
        wtr_addr(o, 13, True, True)
        o("s_lshl_b32 s50, s42, 14\nv_add_u32 v14, s50, v9\ns_mov_b32 s49, 0")
    def step(ch, slot):
        o(f"v_add_u32 v16, {slot*SLOT}, v14\nv_add_u32 v17, {slot*SLOT+32768}, v13")
        st = []
        for ks in range(8):
            F = 80 + 16*(ks & 1)
            rd = "".join(f"ds_read_b64_tr_b16 {r(F+2*e,2)}, v17 offset:{(16*ks+8*e)*128}\n" for e in range(2))
            rd += f"ds_read_b128 {r(F+4,4)}, v16 offset:{ks*1024}\nds_read_b128 {r(F+8,4)}, v16 offset:{8192+ks*1024}\n"
            st.append((rd, mm(F, ch == 0 and ks == 0)))
        return st
    ring_gemm(o, "o", issue, 12, step, extra)
    o("s_branch .Lk3_epi\n.Lk3_z:")
    o("""v_lshrrev_b32 v2, 4, v0
    v_lshlrev_b32 v3, 2, v2
    v_and_b32 v4, 15, v0
    v_xor_b32 v3, v3, v4
    v_lshlrev_b32 v3, 4, v3
    s_lshl_b32 s50, s3, 2
    v_add_u32 v2, s50, v2
    v_lshl_add_u32 v10, v2, 12, v3
    s_lshl_b32 s50, s45, 8
    v_add_u32 v10, s50, v10
    s_lshl_b32 s50, s44, 16
    s_add_u32 s50, s50, s47
    v_add_u32 v11, s50, v9""")
    def issue(ch, slot):
        for m in range(8):
            o(f"s_mov_b32 s52, {ZO + (128*ch + 16*m)*4096}"); dma(o, 10, 24, "s52", 47, slot*SLOT + m*4096)
        for m in range(4):
            o(f"s_mov_b32 s52, {HO + (m>>1)*32768 + ch*8192 + (m&1)*4096}"); dma(o, 11, 24, "s52", 47, slot*SLOT + 32768 + m*4096)
    def extra():
        o("""v_bfe_u32 v2, v0, 2, 2
        v_lshrrev_b32 v3, 5, v0
        v_lshl_add_u32 v3, v3, 3, v2
        v_lshlrev_b32 v3, 8, v3
        v_bfe_u32 v4, v0, 4, 1
        v_lshl_add_u32 v3, v4, 5, v3
        v_and_b32 v4, 3, v0
        v_lshl_add_u32 v3, v4, 3, v3
        s_lshl_b32 s50, s42, 1
        v_xor_b32 v4, s50, v2
        v_lshl_add_u32 v14, v4, 6, v3
        v_xor_b32 v15, 64, v14
        s_lshl_b32 s50, s43, 13
        v_add_u32 v13, s50, v9
        s_mov_b32 s49, 1024""")
    def step(ch, slot):
        o(f"v_add_u32 v16, {slot*SLOT}, v14\nv_add_u32 v18, {slot*SLOT}, v15\nv_add_u32 v17, {slot*SLOT+32768}, v13")
        st = []
        for ks in range(8):
            F = 80 + 16*(ks & 1)
            rd = f"ds_read_b128 {r(F,4)}, v17 offset:{ks*1024}\n"
            for s_, v in ((0, 16), (1, 18)):
                rd += "".join(f"ds_read_b64_tr_b16 {r(F+4+4*s_+2*e,2)}, v{v} offset:{(16*ks+4*e)*256}\n" for e in range(2))
            st.append((rd, mm(F, ch == 0 and ks == 0)))
        return st
    ring_gemm(o, "z", issue, 12, step, extra)
    o(".Lk3_epi:"); stamp(o, 6)
    o("""    v_and_b32 v2, 31, v0
    v_lshrrev_b32 v3, 5, v0
    v_lshlrev_b32 v2, 11, v2
    v_lshl_add_u32 v2, v3, 5, v2
    s_lshl_b32 s50, s45, 18
    s_lshl_b32 s51, s42, 17
    s_add_u32 s50, s50, s51
    s_lshl_b32 s51, s44, 7
    s_add_u32 s50, s50, s51
    s_lshl_b32 s51, s43, 6
    s_add_u32 s50, s50, s51
    s_add_u32 s50, s50, s49
    s_add_u32 s51, s50, 65536
    s_nop 3""")
    for st in range(2):
        for j in range(8): o(f"v_cvt_pk_bf16_f32 v{80+8*st+j}, v{32+16*st+2*j}, v{33+16*st+2*j}")
        for hh in range(2): o(f"buffer_store_dwordx4 {r(80+8*st+4*hh,4)}, v2, s[28:31], s{50+st} offen offset:{16*hh}")
    tail(o, name, 2)
    return name, 128
```

```python
import sys
from gen_common import *
from gen_k1 import k1
from gen_k2 import k2, K2_LDS
from gen_k3 import k3
o = A(); ks = [k1(o), k2(o), k3(o)]
hdr = f"""; MQA attention (32 heads sharing K/V) + GFNet spectral filter, three launches (generated by hand-written scripts)
; @launch kernel=k1_kernel grid=(256,1,1) block=(256,1,1) lds={6*US+16384}
; @launch kernel=k2_kernel grid=(256,1,1) block=(512,1,1) lds={K2_LDS}
; @launch kernel=k3_kernel grid=(256,1,1) block=(256,1,1) lds={6*US}
.amdgcn_target "amdgcn-amd-amdhsa--gfx950"
.text
"""
out = sys.argv[1] if len(sys.argv) > 1 else "concat_heads__grouped_kv_mqa__spectral_gfnet__prompt.s"
open(out, "w").write(hdr + o.text() + '.section .rodata,"a"\n' + "".join(desc(*k) for k in ks))
```

```python
import struct
MB = 1 << 20
QF, KF, VF, YO, OF, ZO, HO, TO = 0, 2*MB, 2*MB + 65536, 3*MB, 5*MB, 7*MB, 9*MB, 10*MB
WT = 12*MB + 512*1024
WS_N = 15*MB
def f2u(x): return struct.unpack("<I", struct.pack("<f", x))[0]
def fl(x): return "0x%08x" % f2u(x)
class A:
    def __init__(s): s.l = []
    def __call__(s, txt):
        for x in txt.strip("\n").split("\n"):
            x = x.strip()
            if x: s.l.append(x if x.endswith(":") else "  " + x)
    def text(s): return "\n".join(s.l) + "\n"
def r(a, n): return f"v[{a}:{a+n-1}]"
def mf32(d, a, b, c): return f"v_mfma_f32_32x32x16_bf16 {r(d,16)}, {r(a,4)}, {r(b,4)}, {c if isinstance(c,str) else r(c,16)}"
def mf16(d, a, b, c): return f"v_mfma_f32_16x16x32_bf16 {r(d,4)}, {r(a,4)}, {r(b,4)}, {c if isinstance(c,str) else r(c,4)}"
def srd(o, d, p, n): o(f"s_mov_b32 s{d}, s{p}\ns_mov_b32 s{d+1}, s{p+1}\ns_mov_b32 s{d+2}, {n}\ns_mov_b32 s{d+3}, 0x00020000")
def head(o, name, nwg):
    o(f".p2align 8\n.globl {name}\n.type {name},@function\n{name}:")
    o(f"""s_cmp_ge_u32 s2, {nwg}
    s_cbranch_scc1 .Lend_{name}
    s_load_dwordx16 s[4:19], s[0:1], 0
    s_load_dwordx2 s[20:21], s[0:1], 64
    s_load_dwordx2 s[22:23], s[0:1], 80
    v_lshrrev_b32 v1, 6, v0
    v_and_b32 v0, 63, v0
    v_readfirstlane_b32 s3, v1
    s_and_b32 s40, s2, 7
    s_lshr_b32 s41, s2, 3""")
    if STAMP:
        for i in range(1, 7): o(f"s_mov_b32 s{80+2*i}, 0")
    stamp(o, 0)
import os
STAMP = bool(os.environ.get("STAMP"))
def stamp(o, i):
    if STAMP: o(f"s_memrealtime s[{80+2*i}:{81+2*i}]")
def tail(o, name, kid=0):
    o(f".Lfin_{name}:")
    if STAMP:
        o("s_waitcnt vmcnt(0)"); stamp(o, 7); o("s_waitcnt lgkmcnt(0)\nv_mov_b32 v2, 0")
        for i in range(8): o(f"v_writelane_b32 v2, s{80+2*i}, {i}")
        o(f"s_lshl_b32 s50, s2, 3\ns_add_u32 s50, s50, s3\ns_lshl_b32 s50, s50, 5\ns_add_u32 s50, s50, {12*MB + kid*65536}\ns_mov_b32 s26, {15*MB}\nv_lshlrev_b32 v3, 2, v0\ns_mov_b64 exec, 0xff\nbuffer_store_dword v2, v3, s[24:27], s50 offen")
    o(f".Lend_{name}:\ns_endpgm")
def desc(name, vg):
    return f""".p2align 6
.amdhsa_kernel {name}
  .amdhsa_next_free_vgpr {vg}
  .amdhsa_next_free_sgpr 102
  .amdhsa_accum_offset {vg}
  .amdhsa_group_segment_fixed_size 0
  .amdhsa_kernarg_size 88
  .amdhsa_user_sgpr_count 2
  .amdhsa_user_sgpr_kernarg_segment_ptr 1
  .amdhsa_system_sgpr_workgroup_id_x 1
.end_amdhsa_kernel
"""
def dma(o, voff, s, soff, lds_s, lds_imm):
    o(f"s_add_u32 m0, s{lds_s}, {lds_imm}\ns_nop 0\nbuffer_load_dwordx4 v{voff}, s[{s}:{s+3}], {soff} offen lds")

SLOT = 53248
def ring_gemm(o, tag, issue, nper, step, extra=None):
    for ch in range(3): issue(ch, ch)
    if extra: extra()
    stamp(o, 1)
    for ch in range(4):
        slot = ch % 3
        n = {0: 2*nper, 1: nper, 2: nper, 3: 0}[ch]
        o(f"s_waitcnt vmcnt({n})\ns_barrier")
        stamp(o, 2+ch)
        if ch == 1: issue(3, 0)
        st = step(ch, slot)
        o(st[0][0])
        for ks in range(8):
            nrd = 0
            if ks < 7:
                o(st[ks+1][0]); nrd = sum(1 for x in st[ks+1][0].split("\n") if x.strip().startswith("ds_"))
            o(f"s_waitcnt lgkmcnt({nrd})")
            o(st[ks][1])
```

```python
from gen_common import *
import math
def wtr_addr(o, v, wo_order, perm):
    o(f"""v_lshrrev_b32 v2, 2, v0
    v_and_b32 v2, 3, v2
    v_lshrrev_b32 v3, 5, v0
    v_lshlrev_b32 v4, {2 if wo_order else 3}, v3
    v_add_u32 v4, v4, v2
    v_lshlrev_b32 v{v}, 7, v4
    v_lshrrev_b32 v2, 1, v2
    v_xor_b32 v2, s43, v2
    v_lshl_add_u32 v{v}, v2, 6, v{v}
    v_bfe_u32 v4, v0, 4, 1
    v_and_b32 v5, 3, v0""")
    if perm:
        o(f"""v_and_b32 v6, 1, v5
        v_lshrrev_b32 v5, 1, v5
        v_lshl_add_u32 v5, v6, 2, v5
        v_lshl_add_u32 v5, v4, 1, v5""")
    else: o("v_lshl_add_u32 v5, v4, 2, v5")
    o(f"v_lshl_add_u32 v{v}, v5, 3, v{v}")
def w_dma_addr(o, v):
    o(f"""v_lshrrev_b32 v2, 3, v0
    v_and_b32 v3, 7, v0
    v_lshrrev_b32 v4, 4, v0
    v_and_b32 v4, 1, v4
    v_lshlrev_b32 v4, 2, v4
    v_xor_b32 v3, v3, v4
    v_lshlrev_b32 v3, 4, v3
    v_lshl_add_u32 v{v}, v2, 10, v3
    s_lshl_b32 s50, s44, 7
    s_lshl_b32 s51, s3, 13
    s_add_u32 s50, s50, s51
    v_add_u32 v{v}, s50, v{v}""")
def k1(o):
    name = "k1_kernel"
    head(o, name, 256)
    o("""s_lshr_b32 s45, s41, 3
    s_and_b32 s45, s45, 1
    s_lshl_b32 s46, s40, 1
    s_add_u32 s45, s45, s46
    s_and_b32 s44, s41, 7
    s_lshr_b32 s42, s3, 1
    s_and_b32 s43, s3, 1
    s_lshl_b32 s47, s3, 10
    s_waitcnt lgkmcnt(0)""")
    srd(o, 24, 22, WS_N)
    o("s_cmp_ge_u32 s41, 16\ns_cbranch_scc1 .Lk1_y")
    srd(o, 28, 4, 2*MB); srd(o, 32, 6, 512*1024)
    o("s_and_b32 s48, s44, 1\ns_cmp_eq_u32 s48, 0\ns_cselect_b32 s36, s8, s10\ns_cselect_b32 s37, s9, s11\ns_mov_b32 s38, 16384\ns_mov_b32 s39, 0x00020000")
    o("""v_lshrrev_b32 v2, 4, v0
    s_lshl_b32 s50, s3, 2
    v_add_u32 v2, s50, v2
    v_and_b32 v3, 15, v0
    v_xor_b32 v3, v3, v2
    v_lshlrev_b32 v3, 4, v3
    v_lshl_add_u32 v10, v2, 10, v3
    s_lshl_b32 s50, s45, 17
    v_add_u32 v10, s50, v10
    v_lshlrev_b32 v12, 4, v0
    v_add_u32 v12, s47, v12""")
    w_dma_addr(o, 11)
    def issue(ch, slot):
        for m in range(8):
            o(f"s_mov_b32 s52, {m*16384 + ch*256}"); dma(o, 10, 28, "s52", 47, slot*SLOT + m*4096)
        for m in range(4):
            o(f"s_mov_b32 s52, {ch*131072 + m*32768}"); dma(o, 11, 32, "s52", 47, slot*SLOT + 32768 + m*4096)
        o(f"s_mov_b32 s52, {ch*4096}"); dma(o, 12, 36, "s52", 47, slot*SLOT + 49152)
    def extra():
        wtr_addr(o, 13, False, False)
        o("""v_and_b32 v2, 31, v0
        v_lshrrev_b32 v3, 5, v0
        v_and_b32 v4, 15, v0
        v_xor_b32 v3, v3, v4
        v_lshlrev_b32 v3, 4, v3
        v_lshl_add_u32 v14, v2, 8, v3
        s_lshl_b32 s50, s42, 14
        v_add_u32 v14, s50, v14
        v_lshrrev_b32 v3, 5, v0
        v_lshrrev_b32 v2, 2, v0
        v_and_b32 v2, 3, v2
        v_lshl_add_u32 v2, v3, 3, v2
        v_and_b32 v3, 3, v0
        v_lshlrev_b32 v3, 3, v3
        v_lshl_add_u32 v15, v2, 5, v3""")
        o("""s_lshl_b32 s50, s45, 3
        s_add_u32 s50, s50, s44
        s_cmp_ge_u32 s50, 52
        s_cbranch_scc1 .Lk1_notab
        s_cmp_lg_u32 s3, 0
        s_cbranch_scc1 .Lk1_notab
        s_mul_i32 s51, s50, 43
        s_lshr_b32 s51, s51, 9
        s_mul_i32 s52, s51, 12
        s_sub_u32 s52, s50, s52
        s_and_b32 s53, s52, 3
        s_lshr_b32 s52, s52, 2
        s_lshl_b32 s54, s51, 4
        s_and_b32 s60, s53, 1
        s_lshr_b32 s61, s53, 1
        s_cmp_eq_u32 s51, 4
        s_cbranch_scc1 .Lk1_t32
        s_cmp_eq_u32 s52, 0
        s_cbranch_scc0 .Lk1_ttw""")
        o(f"s_lshl_b32 s55, s60, 5\ns_mov_b32 s56, 3\ns_mov_b32 s57, 4\ns_mov_b32 s58, {fl(1/64)}\ns_mov_b32 s59, s61\ns_mov_b32 s62, 1\ns_branch .Lk1_tgo")
        o(f".Lk1_t32:\ns_lshl_b32 s54, s60, 4\ns_mov_b32 s55, 0\ns_mov_b32 s56, 2\ns_mov_b32 s57, 16\ns_mov_b32 s58, {fl(1/32)}\ns_mov_b32 s59, s61\ns_mov_b32 s62, 1\ns_branch .Lk1_tgo")
        o(f""".Lk1_ttw:
        s_lshl_b32 s55, s61, 4
        s_mov_b32 s63, s54
        s_cmp_eq_u32 s52, 2
        s_cselect_b32 s54, s55, s63
        s_cselect_b32 s55, s63, s55
        s_mov_b32 s56, 2\ns_mov_b32 s57, 4\ns_mov_b32 s58, {fl(1/2048)}\ns_mov_b32 s59, s60\ns_mov_b32 s62, 0
        .Lk1_tgo:
        s_cmp_eq_u32 s59, 0
        s_cselect_b32 s59, 0, {fl(-0.25)}
        v_and_b32 v2, 15, v0
        v_add_u32 v2, s54, v2
        v_cvt_f32_u32 v2, v2
        v_mul_f32 v2, s58, v2
        v_lshrrev_b32 v3, 4, v0
        v_lshlrev_b32 v3, s56, v3
        v_add_u32 v3, s55, v3
        v_add_u32 v4, s57, v3
        v_mov_b32 v5, s59""")
        for e in range(8):
            o(f"v_add_u32 v{20+e}, {e&3}, v{3+(e>>2)}\nv_cvt_f32_u32 v{20+e}, v{20+e}\nv_fma_f32 v{20+e}, v{20+e}, v2, v5\nv_cos_f32 v{20+e}, v{20+e}")
        o("s_cmp_eq_u32 s62, 0\ns_cbranch_scc1 .Lk1_tst")
        for e in range(4): o(f"v_cvt_pk_bf16_f32 v{20+e}, v{20+2*e}, v{21+2*e}")
        o(f""".Lk1_tst:
        s_lshl_b32 s50, s50, 10
        s_add_u32 s50, s50, {TO}
        v_lshlrev_b32 v2, 4, v0
        buffer_store_dwordx4 v[20:23], v2, s[24:27], s50 offen
        s_waitcnt vmcnt(0)
        .Lk1_notab:""")
        o("""s_lshr_b32 s50, s44, 2
        s_cmp_lg_u32 s50, s42
        s_cbranch_scc1 .Lk1_v0
        s_cmp_lg_u32 s48, s43
        s_cbranch_scc1 .Lk1_v0
        s_bfe_u32 s50, s44, 0x10001
        s_lshl_b32 s50, s50, 1
        s_add_u32 s50, s50, s48""")
    def mkstep(var):
        def step(ch, slot):
            o(f"v_add_u32 v16, {slot*SLOT}, v14\nv_add_u32 v17, {slot*SLOT+32768}, v13\nv_add_u32 v18, {slot*SLOT+49152}, v15")
            st = []
            for ks in range(8):
                F = 80 + 16*(ks & 1)
                rd = f"v_xor_b32 v19, {ks*32}, v16\n" + "".join(f"ds_read_b64_tr_b16 {r(F+2*e,2)}, v17 offset:{(16*ks+4*e)*128}\n" for e in range(2))
                rd += f"ds_read_b128 {r(F+4,4)}, v19\nds_read_b128 {r(F+8,4)}, v19 offset:8192\n"
                c0 = ch == 0 and ks == 0
                mm = mf32(32, F, F+4, "0" if c0 else 32) + "\n" + mf32(48, F, F+8, "0" if c0 else 48)
                if var is not None:
                    rd += "".join(f"ds_read_b64_tr_b16 {r(F+12+2*e,2)}, v18 offset:{(16*ks+4*e)*32}\n" for e in range(2))
                    X = F+4+4*(var >> 1)
                    mm += "\n" + (mf32(64, X, F+12, "0" if c0 else 64) if var & 1 else mf32(64, F+12, X, "0" if c0 else 64))
                st.append((rd, mm))
            return st
        return step
    for ch in range(3): issue(ch, ch)
    extra()
    for v in range(4): o(f"s_cmp_eq_u32 s50, {v}\ns_cbranch_scc1 .Lk1_kv{v}")
    for var in (None, 0, 1, 2, 3):
        o(".Lk1_v0:" if var is None else f".Lk1_kv{var}:")
        ring_gemm(o, "q", (lambda ch, sl: issue(ch, sl) if ch == 3 else None), 13, mkstep(var))
        if var is not None:
            o(f"""s_nop 15
            s_lshl_b32 s50, s45, 2
            s_lshr_b32 s51, s44, 1
            s_add_u32 s50, s50, s51
            s_lshl_b32 s50, s50, 10
            s_add_u32 s50, s50, {VF if var & 1 else KF}""")
            for j in range(8 if var & 1 else 4): o(f"v_cvt_pk_bf16_f32 v{64+j}, v{64+2*j}, v{65+2*j}")
            if var & 1:
                o("""v_bfe_u32 v2, v0, 4, 1
                v_cmp_eq_u32 vcc, 1, v2
                v_lshlrev_b32 v2, 9, v2
                v_lshrrev_b32 v3, 5, v0
                v_lshl_add_u32 v2, v3, 8, v2
                v_and_b32 v3, 15, v0
                v_lshl_add_u32 v2, v3, 4, v2""")
                for j in range(4): o(f"v_cndmask_b32 v{64+j}, v{64+j}, v{68+j}, vcc")
            else: o("v_lshlrev_b32 v2, 4, v0")
            o("buffer_store_dwordx4 v[64:67], v2, s[24:27], s50 offen")
        if var != 3: o("s_branch .Lk1_qepi")
    o(".Lk1_qepi:"); stamp(o, 6)
    o(f"""    s_nop 15
    s_mov_b32 s52, {fl(0.25*math.log2(math.e))}
    s_lshl_b32 s50, s45, 2
    s_lshl_b32 s51, s42, 1
    s_add_u32 s50, s50, s51
    s_lshl_b32 s50, s50, 5
    s_lshl_b32 s51, s44, 2
    s_add_u32 s50, s50, s51
    s_lshl_b32 s51, s43, 1
    s_add_u32 s50, s50, s51
    s_lshl_b32 s50, s50, 10
    s_add_u32 s51, s50, 32768
    v_lshlrev_b32 v2, 4, v0""")
    for st in range(2):
        for j in range(16): o(f"v_mul_f32 v{32+16*st+j}, s52, v{32+16*st+j}")
        for j in range(8): o(f"v_cvt_pk_bf16_f32 v{80+8*st+j}, v{32+16*st+2*j}, v{33+16*st+2*j}")
        for hh in range(2): o(f"buffer_store_dwordx4 {r(80+8*st+4*hh,4)}, v2, s[24:27], s{50+st} offen offset:{1024*hh}")
    o(f"s_branch .Lfin_{name}")
    o(".Lk1_y:")
    srd(o, 28, 14, 2*MB); srd(o, 32, 16, 2048*257*2); srd(o, 36, 18, 2048*257*2)
    o(f"""s_lshl_b32 s56, s45, 3
    s_add_u32 s56, s56, s44
    s_and_b32 s57, s56, 3
    s_lshr_b32 s56, s56, 2
    s_lshl_b32 s56, s56, 3
    s_lshl_b32 s58, s3, 1
    s_add_u32 s56, s56, s58
    s_lshr_b32 s58, s56, 6
    s_lshl_b32 s58, s58, 4
    s_and_b32 s59, s56, 15
    s_add_u32 s58, s58, s59
    s_bfe_u32 s59, s56, 0x20004
    s_lshl_b32 s59, s59, 8
    s_add_u32 s58, s58, s59
    s_mul_i32 s58, s58, 514
    s_lshl_b32 s59, s57, 7
    s_add_u32 s60, s58, s59
    v_lshlrev_b32 v8, 1, v0
    s_lshl_b32 s61, s56, 5
    s_lshl_b32 s59, s57, 19
    s_add_u32 s62, s61, s59
    s_add_u32 s62, s62, {WT}
    s_add_u32 s61, s61, {WT + 256*8192}
    v_and_b32 v2, 3, v0
    v_bfe_u32 v3, v0, 2, 1
    v_lshl_add_u32 v2, v3, 4, v2
    v_mul_u32_u24 v2, 32896, v2
    v_bfe_u32 v3, v0, 3, 1
    v_mul_u32_u24 v3, 514, v3
    v_add3_u32 v2, v2, v3, s58
    v_add_u32 v2, 512, v2
    s_cmp_eq_u32 s57, 0
    s_cselect_b32 s64, 0xffff, 0
    s_mov_b32 s65, 0""")
    for tk in range(2):
        for j in range(8):
            o(f"s_add_u32 s52, s60, {514*tk + 32896*(16*(j>>2) + (j&3))}")
            o(f"buffer_load_short_d16 v{160+8*tk+j}, v8, s[32:35], s52 offen\nbuffer_load_short_d16_hi v{176+8*tk+j}, v8, s[36:39], s52 offen")
    o("v_cndmask_b32 v2, -1, v2, s[64:65]\nbuffer_load_short_d16 v192, v2, s[32:35], 0 offen\nbuffer_load_short_d16_hi v193, v2, s[36:39], 0 offen")
    o("""s_lshr_b32 s50, s45, 3
    s_and_b32 s51, s45, 7
    s_lshl_b32 s53, s50, 10
    s_lshl_b32 s54, s42, 9
    s_add_u32 s53, s53, s54
    s_lshl_b32 s54, s43, 7
    s_add_u32 s53, s53, s54
    s_lshl_b32 s54, s51, 2
    s_add_u32 s53, s53, s54
    s_lshl_b32 s53, s53, 10
    v_lshlrev_b32 v9, 4, v0
    v_add_u32 v10, s53, v9
    s_lshl_b32 s54, s43, 1
    s_add_u32 s54, s54, s42
    s_mul_i32 s55, s54, 8448""")
    for p in range(4):
        for q in range(8):
            o(f"s_mov_b32 s52, {(256*(q>>2) + 32*(q&3) + p)*1024}"); dma(o, 10, 28, "s52", 55, (32*p+q)*1056)
    o(f"""s_lshl_b32 s56, s45, 3
    s_add_u32 s56, s56, s44
    s_lshl_b32 s56, s56, 2
    s_add_u32 s56, s56, s3
    s_lshr_b32 s57, s56, 5
    s_and_b32 s58, s56, 31
    v_and_b32 v2, 3, v0
    v_bfe_u32 v3, v0, 2, 1
    v_lshl_add_u32 v2, v3, 4, v2
    v_bfe_u32 v3, v0, 3, 2
    v_lshl_add_u32 v2, v3, 2, v2
    s_lshl_b32 s57, s57, 5
    v_add_u32 v2, s57, v2
    v_cvt_f32_u32 v2, v2
    v_mul_f32 v2, {fl(1/512)}, v2
    v_lshrrev_b32 v3, 5, v0
    v_lshlrev_b32 v3, 2, v3
    s_lshl_b32 s59, s58, 3
    v_add_u32 v3, s59, v3
    v_cmp_eq_u32 vcc, 0, v3
    v_mov_b32 v6, {fl(2.0**-19)}
    v_mov_b32 v7, {fl(2.0**-20)}
    v_cndmask_b32 v7, v6, v7, vcc""")
    for jj in range(4):
        o(f"v_add_u32 v4, {jj}, v3\nv_cvt_f32_u32 v4, v4\nv_mul_f32 v{20+2*jj}, v4, v2\nv_add_f32 v{21+2*jj}, 0x3e800000, v{20+2*jj}")
        if jj == 0: o(f"v_mul_f32 v5, {fl(256.0)}, v2\nv_cndmask_b32 v21, v21, v5, vcc")
    for j in range(8): o(f"v_cos_f32 v{20+j}, v{20+j}")
    for j in range(8): o(f"v_mul_f32 v{20+j}, v{7 if j < 2 else 6}, v{20+j}")
    for j in range(4): o(f"v_cvt_pk_bf16_f32 v{28+j}, v{20+2*j}, v{21+2*j}")
    o(f"s_lshl_b32 s56, s56, 10\ns_add_u32 s56, s56, {HO}\nbuffer_store_dwordx4 v[28:31], v9, s[24:27], s56 offen")
    o(f"""s_lshl_b32 s56, s44, 6
    s_lshl_b32 s57, s3, 4
    s_add_u32 s56, s56, s57
    v_and_b32 v2, 15, v0
    v_add_u32 v12, s56, v2
    v_lshrrev_b32 v3, 1, v12
    v_and_b32 v4, 1, v12
    v_cmp_eq_u32 vcc, 1, v12
    v_mov_b32 v5, 0x100
    v_and_b32 v6, 1, v3
    v_cndmask_b32 v3, v3, v5, vcc
    v_cndmask_b32 v4, v4, 0, vcc
    v_mov_b32 v7, 0x80008000
    v_mul_lo_u32 v7, v7, v6
    v_cvt_f32_u32 v3, v3
    v_mul_f32 v3, {fl(1/512)}, v3
    v_cvt_f32_u32 v4, v4
    v_mul_f32 v4, 0x3e800000, v4
    v_lshrrev_b32 v5, 4, v0
    v_lshlrev_b32 v6, 3, v5
    v_cvt_f32_u32 v6, v6
    v_fma_f32 v4, v6, v3, v4
    v_mul_u32_u24 v14, 1056, v2
    v_lshl_add_u32 v14, v5, 4, v14
    v_lshlrev_b32 v12, 12, v12
    v_lshl_add_u32 v12, v5, 4, v12
    s_lshl_b32 s50, s50, 11
    s_lshl_b32 s51, s51, 8
    s_add_u32 s50, s50, s51
    s_add_u32 s50, s50, {YO}""")
    for ks in range(8):
        for j in range(8): o(f"v_fmamk_f32 v{20+j}, v3, {fl(32.0*ks+j)}, v4")
        for j in range(8): o(f"v_cos_f32 v{20+j}, v{20+j}")
        for j in range(4): o(f"v_cvt_pk_bf16_f32 v{64+4*ks+j}, v{20+2*j}, v{21+2*j}")
        for j in range(4): o(f"v_xor_b32 v{96+4*ks+j}, v7, v{64+4*ks+j}")
    o("s_waitcnt vmcnt(33)\ns_mov_b32 s52, 0xffff\nv_lshlrev_b32 v8, 13, v0\nv_lshlrev_b32 v2, 2, v0\nv_cndmask_b32 v2, -4, v2, s[64:65]")
    for j in range(16): o(f"v_bfi_b32 v{160+j}, s52, v{160+j}, v{176+j}")
    o("v_bfi_b32 v192, s52, v192, v193")
    for j in range(4): o(f"buffer_store_dwordx4 {r(160+4*j,4)}, v8, s[24:27], s62 offen offset:{16*j}")
    o("buffer_store_dword v192, v2, s[24:27], s61 offen")
    stamp(o, 1)
    for p in range(4):
        o(f"s_waitcnt vmcnt({30-8*p})\ns_barrier\nv_add_u32 v15, {32*p*1056}, v14"); stamp(o, 2+p)
        def rd(ks): return "".join(f"ds_read_b128 {r(128+8*(ks&3)+4*a,4)}, v15 offset:{a*16*1056+ks*64}\n" for a in range(2))
        for ks in range(3): o(rd(ks))
        for ks in range(16):
            if ks+3 < 16: o(rd(ks+3))
            o(f"s_waitcnt lgkmcnt({2*min(3, 15-ks)})")
            for a in range(2): o(mf16(32+8*p+4*a, 128+8*(ks&3)+4*a, 64+4*ks, "0" if ks == 0 else 32+8*p+4*a))
    o("s_nop 7"); stamp(o, 6)
    for p in range(4):
        for j in range(4): o(f"v_cvt_pk_bf16_f32 v{64+4*p+j}, v{32+8*p+2*j}, v{33+8*p+2*j}")
        o(f"buffer_store_dwordx4 {r(64+4*p,4)}, v12, s[24:27], s50 offen offset:{64*p}")
    tail(o, name)
    return name, 200
```

```python
from gen_common import *
EX = 131072
K2_LDS = EX + 2*9216
UN = 4
TB = 8
S0, S1, OA, CC, P0, KB, VB, QR = 16, 32, 48, 64, 80, 96, 104, 120
def fft(o):
    X, T64, TW1, TW2, T32, W, NS64, NS32, D = 16, 48, 64, 80, 96, 112, 128, 136, 144
    o(f"""v_and_b32 v2, 15, v0
    v_lshrrev_b32 v3, 4, v0
    v_lshlrev_b32 v5, 6, v2
    v_lshl_add_u32 v5, v3, 4, v5
    v_lshlrev_b32 v6, 4, v0
    s_mul_i32 s50, s60, 12288
    s_add_u32 s50, s50, {TO}
    s_add_u32 s51, s50, 4096
    s_add_u32 s52, s50, 8192
    s_mov_b32 s53, {TO+49152}
    s_lshl_b32 s54, s60, 4
    v_add_u32 v7, s54, v2
    v_lshlrev_b32 v8, 5, v0
    s_lshl_b32 s55, s61, 13
    s_lshl_b32 s56, s60, 11
    s_add_u32 s55, s55, s56
    s_add_u32 s56, s55, {WT}""")
    for p in range(2):
        for t in range(2):
            for ks in range(2): o(f"buffer_load_dwordx4 {r(X+16*p+8*t+4*ks,4)}, v5, s[24:27], s{62+p} offen offset:{2048*ks+1024*t}")
    for i, (b, s) in enumerate(((T64, 50), (TW1, 51), (T32, 53), (TW2, 52))):
        for j in range(4): o(f"buffer_load_dwordx4 {r(b+4*j,4)}, v6, s[24:27], s{s} offen offset:{1024*j}")
    for j in range(2): o(f"buffer_load_dwordx4 {r(W+8+4*j,4)}, v8, s[24:27], s56 offen offset:{16*j}")
    o(f"""v_mul_u32_u24 v9, 144, v2
    v_lshl_add_u32 v9, v3, 3, v9
    s_lshl_b32 s55, s60, 5
    s_add_u32 s55, s55, s66
    v_add_u32 v9, s55, v9
    v_lshrrev_b32 v10, 2, v2
    v_lshlrev_b32 v10, 3, v10
    v_and_b32 v11, 3, v2
    v_add_u32 v10, v10, v11
    v_mul_u32_u24 v10, 144, v10
    v_lshl_add_u32 v10, v3, 4, v10
    v_add_u32 v10, s66, v10
    v_lshlrev_b32 v11, 6, v7
    v_lshl_add_u32 v11, v3, 4, v11
    s_cmp_lt_u32 s3, 4
    s_cbranch_scc1 .Lk2_nw
    s_waitcnt vmcnt(0)
    .Lk2_nw:
    s_barrier
""")
    stamp(o, 1); o("s_waitcnt vmcnt(14)"); stamp(o, 2)
    for j in range(8): o(f"v_xor_b32 v{NS64+j}, 0x80008000, v{T64+8+j}")
    R_, I_ = D, D+8
    def cplx(dr, di, steps, dataA):
        out = []
        for n, (xr, xi, C, Sr, Si) in enumerate(steps):
            f = (lambda d, x, k, c: mf16(d, x, k, c)) if dataA else (lambda d, x, k, c: mf16(d, k, x, c))
            out += [f(dr, xr, C, "0" if n == 0 else dr), f(di, xi, C, "0" if n == 0 else di), f(dr, xi, Sr, dr), f(di, xr, Si, di)]
        return out
    def inter(a, b):
        for x, y in zip(a, b): o(x); o(y)
    def cmul(c, s, sign, dst):
        for j in range(8): o(f"v_mul_f32 v{dst+j}, v{R_+j}, v{c(j)}\nv_mul_f32 v{dst+8+j}, v{I_+j}, v{c(j)}")
        for j in range(8):
            if sign > 0: o(f"v_fma_f32 v{dst+j}, -v{I_+j}, v{s(j)}, v{dst+j}\nv_fmac_f32 v{dst+8+j}, v{R_+j}, v{s(j)}")
            else: o(f"v_fmac_f32 v{dst+j}, v{I_+j}, v{s(j)}\nv_fma_f32 v{dst+8+j}, -v{R_+j}, v{s(j)}, v{dst+8+j}")
    def pack(src, dst):
        for j in range(8): o(f"v_cvt_pk_bf16_f32 v{dst+j}, v{src+2*j}, v{src+2*j+1}")
    o("s_nop 0")
    inter(*[cplx(R_+4*t, I_+4*t, [(X+8*t+4*k, X+16+8*t+4*k, T64+4*k, T64+8+4*k, NS64+4*k) for k in range(2)], True) for t in range(2)])
    o("s_waitcnt vmcnt(6)")
    for j in range(8): o(f"v_xor_b32 v{NS32+j}, 0x80008000, v{T32+8+j}")
    twc = lambda b: (lambda j: b + 8*(j >> 2) + (j & 3)); tws = lambda b: (lambda j: b + 8*(j >> 2) + 4 + (j & 3))
    cmul(twc(TW1), tws(TW1), -1, X); pack(X, X+16); o("s_nop 1")
    inter(*[cplx(R_+4*t, I_+4*t, [(X+16, X+20, T32+4*t, T32+8+4*t, NS32+4*t)], False) for t in range(2)])
    o("s_waitcnt vmcnt(0)")
    for j in range(8): o(f"v_lshlrev_b32 v{W+j}, 16, v{W+8+j}\nv_and_b32 v{W+8+j}, 0xffff0000, v{W+8+j}")
    cmul(lambda j: W+j, lambda j: W+8+j, +1, X); pack(X, X+16); o("s_nop 1")
    inter(*[cplx(R_+4*t, I_+4*t, [(X+16, X+20, T32+4*t, NS32+4*t, T32+8+4*t)], True) for t in range(2)])
    o("s_nop 7")
    cmul(twc(TW2), tws(TW2), +1, X); pack(X, X+16)
    for p in range(2):
        for t in range(2): o(f"ds_write_b64 v9, {r(X+16+4*p+2*t,2)} offset:{p*4608+t*16*144}")
    o("s_waitcnt lgkmcnt(0)"); stamp(o, 3); o("s_barrier")
    for t in range(2):
        for p in range(2):
            for ks in range(2): o(f"ds_read_b128 {r(X+16*p+8*t+4*ks,4)}, v10 offset:{p*4608+t*4*144+ks*64}")
    o("s_waitcnt lgkmcnt(0)")
    inter(*[cplx(R_+4*t, I_+4*t, [(X+8*t+4*k, X+16+8*t+4*k, T64+4*k, NS64+4*k, T64+8+4*k) for k in range(2)], True) for t in range(2)])
    o("s_nop 7")
    pack(D, W)
    for p in range(2): o(f"buffer_store_dwordx4 {r(W+4*p,4)}, v11, s[24:27], s{64+p} offen")

def k2(o):
    name = "k2_kernel"
    head(o, name, 256)
    o("s_waitcnt lgkmcnt(0)")
    srd(o, 24, 22, WS_N)
    o(f"""s_lshl_b32 s44, s40, 8
    s_lshl_b32 s45, s41, 3
    s_add_u32 s44, s44, s45
    s_add_u32 s44, s44, s3
    s_lshl_b32 s44, s44, 10
    v_lshlrev_b32 v1, 4, v0
    s_mov_b32 s46, 0xffff
    s_mov_b32 s47, 0xffff
    s_mov_b32 s48, 0
    s_mov_b32 s49, -1
    buffer_load_dwordx4 {r(12,4)}, v1, s[24:27], s44 offen
    s_cmp_lt_u32 s3, 4
    s_cbranch_scc1 .Lk2_fft
    s_sub_u32 s50, s3, 4
    s_lshl_b32 s50, s50, 10""")
    for g in range(16):
        for kv in range(2):
            o(f"s_add_u32 s52, s50, {KF + kv*65536 + g*4096}"); dma(o, 1, 24, "s52", 50, kv*65536 + g*4096)
    o(f"""s_cmp_eq_u32 s2, 0
    s_cbranch_scc1 .Lk2_fft
    s_mov_b32 s49, {TB//UN}
    s_waitcnt vmcnt({32 - 2*((TB+2+3)//4)})
    s_barrier
    s_branch .Lk2_att
    .Lk2_fft:
    s_and_b32 s60, s3, 3
    s_lshl_b32 s61, s40, 5
    s_add_u32 s61, s61, s41
    s_lshr_b32 s50, s3, 2
    s_mul_i32 s66, s50, 9216
    s_add_u32 s66, s66, {EX}
    s_lshl_b32 s51, s61, 1
    s_add_u32 s51, s51, s50
    s_lshl_b32 s51, s51, 12
    s_add_u32 s62, s51, {YO}
    s_add_u32 s63, s51, {YO+4096}
    s_add_u32 s64, s51, {ZO}
    s_add_u32 s65, s51, {ZO+4096}
    s_lshl_b32 s50, s50, 8
    s_add_u32 s61, s61, s50
    s_cmp_eq_u32 s2, 0
    s_cselect_b32 s63, {WS_N}, s63
    s_cselect_b32 s65, {WS_N}, s65""")
    fft(o)
    o(".Lk2_att:"); stamp(o, 4)
    for j in range(4): o(f"v_mov_b32 v{QR+j}, v{12+j}")
    for j in range(16): o(f"v_mov_b32 v{CC+j}, 0\nv_mov_b32 v{VB+j}, 0x3f803f80")
    o("""v_lshrrev_b32 v3, 5, v0
    v_and_b32 v4, 15, v0
    v_lshlrev_b32 v3, 8, v3
    v_lshl_add_u32 v2, v4, 4, v3
    v_add_u32 v2, 0x10000, v2
    .Lk2_main:
    v_mov_b32 v10, v1
    v_mov_b32 v11, v2
    s_mov_b32 s53, 0""")
    if STAMP: o("s_memtime s[84:85]")
    o(f"ds_read_b128 {r(KB,4)}, v1\nds_read_b128 {r(KB+4,4)}, v1 offset:1024")
    for j in range(16): o(f"v_mov_b32 v{OA+j}, 0")
    for j in range(8): o(f"v_mov_b32 v{P0+8+j}, 0")
    o("s_waitcnt lgkmcnt(1)"); o(mf32(S0, KB, QR, CC)); o("s_waitcnt lgkmcnt(0)\ns_nop 10\n.Lk2_loop:")
    o(f"s_cmp_lg_u32 s53, s49\ns_cbranch_scc1 .Lk2_nb\ns_waitcnt vmcnt(0)\ns_barrier\ns_mov_b32 s49, -1"); stamp(o, 5); o(".Lk2_nb:")
    for T in range(UN):
        S, Sn, P, Pp = (S0, S1, P0, P0+8) if T % 2 == 0 else (S1, S0, P0+8, P0)
        o(mf32(Sn, KB+4*((T+1) & 1), QR, CC))
        o(f"ds_read_b128 {r(KB+4*(T&1),4)}, v10 offset:{(T+2)*1024}")
        o(f"s_mov_b64 exec, s[46:47]\nds_read_b128 {r(VB+8*(T&1),4)}, v11 offset:{T*1024}\nds_read_b128 {r(VB+8*(T&1)+4,4)}, v11 offset:{T*1024+512}\ns_mov_b64 exec, -1")
        va = []
        for j in range(8):
            va += [f"v_exp_f32 v{S+2*j}, v{S+2*j}", f"v_exp_f32 v{S+2*j+1}, v{S+2*j+1}"]
            if j > 0: va += [f"v_cvt_pk_bf16_f32 v{P+j-1}, v{S+2*j-2}, v{S+2*j-1}"]
        va += ["s_waitcnt lgkmcnt(0)", f"v_cvt_pk_bf16_f32 v{P+7}, v{S+14}, v{S+15}"]
        Vp = VB+8*((T-1) & 1)
        for i, x in enumerate(va):
            if i == 8: o(mf32(OA, Vp, Pp, OA))
            if i == 16: o(mf32(OA, Vp+4, Pp+4, OA))
            if i == 23 and T == UN-1: o(f"v_add_u32 v10, {UN*1024}, v10\nv_add_u32 v11, {UN*1024}, v11\ns_add_u32 s53, s53, 1\ns_cmp_lg_u32 s53, {64//UN}")
            o(x)
    o("s_cbranch_scc1 .Lk2_loop")
    if STAMP: o("s_memtime s[86:87]")
    stamp(o, 6); o("s_nop 1"); o(mf32(OA, VB+8, P0+8, OA)); o(mf32(OA, VB+12, P0+12, OA)); o("s_nop 11")
    o(f"""s_cmp_lg_u32 s48, 0
    s_cbranch_scc1 .Lk2_fin
    v_add_f32 v3, abs(v{OA}), abs(v{OA+1})""")
    for j in range(2, 8): o(f"v_add_f32 v3, v3, abs(v{OA+j})")
    o(f"""s_mov_b32 s50, {fl(2.0**-80)}
    s_mov_b32 s51, {fl(2.0**80)}
    s_mov_b32 s52, {fl(2.0**120)}
    v_cmp_nle_f32 s[54:55], s50, v{OA+8}
    v_cmp_nge_f32 s[56:57], s51, v{OA+8}
    v_cmp_nge_f32 s[58:59], s52, v3
    s_nop 3
    s_or_b64 s[54:55], s[54:55], s[56:57]
    s_or_b64 s[54:55], s[54:55], s[58:59]
    s_cbranch_scc0 .Lk2_fin
    s_mov_b32 s48, 1
    s_mov_b32 s50, 64
    v_mov_b32 v3, 0xff800000
    v_mov_b32 v4, v1
    .Lk2_mx:
    ds_read_b128 {r(KB,4)}, v4
    v_add_u32 v4, 1024, v4
    s_waitcnt lgkmcnt(0)""")
    o(mf32(S0, KB, QR, "0")); o("s_nop 11")
    for j in range(8): o(f"v_max3_f32 v3, v3, v{S0+2*j}, v{S0+2*j+1}")
    o(f"""s_sub_u32 s50, s50, 1
    s_cmp_lg_u32 s50, 0
    s_cbranch_scc1 .Lk2_mx
    v_xor_b32 v4, 32, v0
    v_lshlrev_b32 v4, 2, v4
    ds_bpermute_b32 v5, v4, v3
    s_waitcnt lgkmcnt(0)
    v_max_f32 v3, v3, v5""")
    for j in range(16): o(f"v_sub_f32 v{CC+j}, 0, v3")
    o(f"""s_branch .Lk2_main
    .Lk2_fin:
    v_rcp_f32 v3, v{OA+8}
    s_add_u32 s44, s44, {OF}""")
    for j in range(8): o(f"v_mul_f32 v{OA+j}, v3, v{OA+j}")
    for j in range(4): o(f"v_cvt_pk_bf16_f32 v{4+j}, v{OA+2*j}, v{OA+2*j+1}")
    o("buffer_store_dwordx4 v[4:7], v1, s[24:27], s44 offen")
    tail(o, name, 1)
    return name, 160
```

```python
from gen_common import *
EX = 131072
K2_LDS = EX + 2*9216
UN = 4
PSW = int(os.environ.get("PSW", 48))
TB2 = int(os.environ.get("TB2", 28))
PRE = int(os.environ.get("PRE", 4)); EVERY = int(os.environ.get("EVERY", 8))
TB = int(os.environ.get("TB", 12)); G0 = (TB + 5)//4
S0, S1, OA, CC, P0, KB, VB, QR = 16, 32, 48, 64, 80, 96, 104, 120
class VM:
    def __init__(s, o, pend, every): s.o, s.pend, s.every, s.n, s.cnt, s.tags = o, list(pend), every, 0, 0, {}
    def vm(s, txt, tag=None):
        s.o(txt); s.cnt += 1
        if tag: s.tags[tag] = s.cnt
    def wait(s, tag): s.o(f"s_waitcnt vmcnt({s.cnt - s.tags[tag]})")
    def piece(s):
        if s.pend: s.pend.pop(0)(); s.cnt += 1
    def __call__(s, txt):
        for x in txt.strip("\n").split("\n"):
            s.o(x); s.n += 1
            if s.every and s.n % s.every == 0: s.piece()
def fft(o0, first):
    X, T64, TW1, TW2, T32, W, NS64, NS32, D = 16, 48, 64, 80, 96, 112, 128, 136, 144
    def mk(g, kv):
        def f(): o0(f"s_add_u32 s69, s68, {KF + kv*65536 + g*4096}"); dma(o0, 1, 24, "s69", 68, kv*65536 + g*4096)
        return f
    o = VM(o0, [mk(g, kv) for g in range(G0, 16) for kv in range(2)] if first else [], 0)
    if first:
        o(f"""v_and_b32 v2, 15, v0
        v_lshrrev_b32 v3, 4, v0
        v_lshlrev_b32 v5, 6, v2
        v_lshl_add_u32 v5, v3, 4, v5
        s_mul_i32 s50, s60, 12288
        s_add_u32 s50, s50, {TO}
        s_add_u32 s51, s50, 4096
        s_add_u32 s52, s50, 8192
        s_mov_b32 s53, {TO+49152}
        s_lshl_b32 s54, s60, 4
        v_add_u32 v7, s54, v2
        v_lshlrev_b32 v8, 5, v0""")
    o(f"""s_lshl_b32 s55, s61, 13
    s_lshl_b32 s56, s60, 11
    s_add_u32 s55, s55, s56
    s_add_u32 s56, s55, {WT}""")
    for p in range(2):
        for t in range(2):
            for ks in range(2): o.vm(f"buffer_load_dwordx4 {r(X+16*p+8*t+4*ks,4)}, v5, s[24:27], s{62+p} offen offset:{2048*ks+1024*t}", "X")
    def tab(b, s, tag):
        for j in range(4): o.vm(f"buffer_load_dwordx4 {r(b+4*j,4)}, v1, s[24:27], s{s} offen offset:{1024*j}", tag)
    if first:
        tab(T64, 50, "X")
        o("s_barrier\ns_setprio 2"); stamp(o0, 1)
        tab(TW1, 51, "T1"); tab(T32, 53, "T1")
    for j in range(2): o.vm(f"buffer_load_dwordx4 {r(W+8+4*j,4)}, v8, s[24:27], s56 offen offset:{16*j}", "W")
    if first:
        tab(TW2, 52, "T2")
        o(f"""v_mul_u32_u24 v9, 144, v2
        v_lshl_add_u32 v9, v3, 3, v9
        s_lshl_b32 s55, s60, 5
        s_add_u32 s55, s55, {EX}
        v_add_u32 v9, s55, v9
        v_lshrrev_b32 v10, 2, v2
        v_lshlrev_b32 v10, 3, v10
        v_and_b32 v11, 3, v2
        v_add_u32 v10, v10, v11
        v_mul_u32_u24 v10, 144, v10
        v_lshl_add_u32 v10, v3, 4, v10
        v_add_u32 v10, {EX}, v10
        v_lshlrev_b32 v11, 6, v7
        v_lshl_add_u32 v11, v3, 4, v11""")
        for _ in range(PRE): o.piece()
    else:
        o("v_add_u32 v9, 9216, v9\nv_add_u32 v10, 9216, v10"); o.tags["T1"] = o.tags["T2"] = o.tags["X"]
    o.wait("X"); o.every = EVERY
    if first:
        for j in range(8): o(f"v_xor_b32 v{NS64+j}, 0x80008000, v{T64+8+j}")
    R_, I_ = D, D+8
    def cplx(dr, di, steps, dataA):
        out = []
        for n, (xr, xi, C, Sr, Si) in enumerate(steps):
            f = (lambda d, x, k, c: mf16(d, x, k, c)) if dataA else (lambda d, x, k, c: mf16(d, k, x, c))
            out += [f(dr, xr, C, "0" if n == 0 else dr), f(di, xi, C, "0" if n == 0 else di), f(dr, xi, Sr, dr), f(di, xr, Si, di)]
        return out
    def inter(a, b):
        for x, y in zip(a, b): o(x); o(y)
    def cmul(c, s, sign, dst):
        for j in range(8): o(f"v_mul_f32 v{dst+j}, v{R_+j}, v{c(j)}\nv_mul_f32 v{dst+8+j}, v{I_+j}, v{c(j)}")
        for j in range(8):
            if sign > 0: o(f"v_fma_f32 v{dst+j}, -v{I_+j}, v{s(j)}, v{dst+j}\nv_fmac_f32 v{dst+8+j}, v{R_+j}, v{s(j)}")
            else: o(f"v_fmac_f32 v{dst+j}, v{I_+j}, v{s(j)}\nv_fma_f32 v{dst+8+j}, -v{R_+j}, v{s(j)}, v{dst+8+j}")
    def pack(src, dst):
        for j in range(8): o(f"v_cvt_pk_bf16_f32 v{dst+j}, v{src+2*j}, v{src+2*j+1}")
    o("s_nop 0")
    inter(*[cplx(R_+4*t, I_+4*t, [(X+8*t+4*k, X+16+8*t+4*k, T64+4*k, T64+8+4*k, NS64+4*k) for k in range(2)], True) for t in range(2)])
    o.wait("T1")
    if first:
        for j in range(8): o(f"v_xor_b32 v{NS32+j}, 0x80008000, v{T32+8+j}")
    else: o("s_nop 7")
    twc = lambda b: (lambda j: b + 8*(j >> 2) + (j & 3)); tws = lambda b: (lambda j: b + 8*(j >> 2) + 4 + (j & 3))
    cmul(twc(TW1), tws(TW1), -1, X); pack(X, X+16); o("s_nop 1")
    inter(*[cplx(R_+4*t, I_+4*t, [(X+16, X+20, T32+4*t, T32+8+4*t, NS32+4*t)], False) for t in range(2)])
    o.wait("W")
    for j in range(8): o(f"v_lshlrev_b32 v{W+j}, 16, v{W+8+j}\nv_and_b32 v{W+8+j}, 0xffff0000, v{W+8+j}")
    cmul(lambda j: W+j, lambda j: W+8+j, +1, X); pack(X, X+16); o("s_nop 1")
    inter(*[cplx(R_+4*t, I_+4*t, [(X+16, X+20, T32+4*t, NS32+4*t, T32+8+4*t)], True) for t in range(2)])
    o.wait("T2"); o("s_nop 7")
    cmul(twc(TW2), tws(TW2), +1, X); pack(X, X+16)
    for p in range(2):
        for t in range(2): o(f"ds_write_b64 v9, {r(X+16+4*p+2*t,2)} offset:{p*4608+t*16*144}")
    while o.pend: o.piece()
    o("s_waitcnt vmcnt(0) lgkmcnt(0)" if first else "s_waitcnt lgkmcnt(0)"); o("s_barrier")
    for t in range(2):
        for p in range(2):
            for ks in range(2): o(f"ds_read_b128 {r(X+16*p+8*t+4*ks,4)}, v10 offset:{p*4608+t*4*144+ks*64}")
    o("s_waitcnt lgkmcnt(0)")
    inter(*[cplx(R_+4*t, I_+4*t, [(X+8*t+4*k, X+16+8*t+4*k, T64+4*k, NS64+4*k, T64+8+4*k) for k in range(2)], True) for t in range(2)])
    o("s_nop 7")
    pack(D, W)
    for p in range(2): o(f"buffer_store_dwordx4 {r(W+4*p,4)}, v11, s[24:27], s{64+p} offen")

def k2(o):
    name = "k2_kernel"
    head(o, name, 256)
    o("s_waitcnt lgkmcnt(0)")
    srd(o, 24, 22, WS_N)
    o(f"""s_lshl_b32 s44, s40, 8
    s_lshl_b32 s45, s41, 3
    s_add_u32 s44, s44, s45
    s_add_u32 s44, s44, s3
    s_lshl_b32 s44, s44, 10
    v_lshlrev_b32 v1, 4, v0
    s_mov_b32 s46, 0xffff
    s_mov_b32 s47, 0xffff
    s_mov_b32 s48, 0
    s_mov_b32 s49, -1
    buffer_load_dwordx4 {r(12,4)}, v1, s[24:27], s44 offen
    s_and_b32 s68, s3, 3
    s_lshl_b32 s68, s68, 10
    s_cmp_lt_u32 s3, 4
    s_cbranch_scc1 .Lk2_fft
    s_setprio 3""")
    for g in range(G0):
        for kv in range(2):
            o(f"s_add_u32 s69, s68, {KF + kv*65536 + g*4096}"); dma(o, 1, 24, "s69", 68, kv*65536 + g*4096)
    o(f"""s_mov_b32 s49, {TB//UN}
    s_cmp_eq_u32 s2, 0
    s_cselect_b32 s70, {TB2//UN}, -1
    s_mov_b32 s67, {PSW//UN}
    s_waitcnt vmcnt(0)
    s_barrier
    s_setprio 1
    s_branch .Lk2_att
    .Lk2_fft:
    s_mov_b32 s67, -1
    s_mov_b32 s60, s3
    s_lshl_b32 s61, s40, 5
    s_add_u32 s61, s61, s41
    s_lshl_b32 s51, s61, 13
    s_add_u32 s62, s51, {YO}
    s_add_u32 s63, s51, {YO+4096}
    s_add_u32 s64, s51, {ZO}
    s_add_u32 s65, s51, {ZO+4096}
    s_cmp_eq_u32 s2, 0
    s_cselect_b32 s63, {WS_N}, s63
    s_cselect_b32 s65, {WS_N}, s65""")
    fft(o, True)
    o(f"""s_cmp_lg_u32 s2, 0
    s_cbranch_scc1 .Lk2_fd
    s_mov_b32 s61, 256
    s_mov_b32 s62, {YO+4096}
    s_mov_b32 s64, {ZO+4096}""")
    fft(o, False)
    o(".Lk2_fd:")
    o("s_setprio 0\n.Lk2_att:"); stamp(o, 4)
    for j in range(4): o(f"v_mov_b32 v{QR+j}, v{12+j}")
    o("v_and_b32 v3, 27, v0\nv_mov_b32 v4, 0x3f803f80\nv_cmp_eq_u32 vcc, 16, v3\nv_cndmask_b32 v4, 0, v4, vcc")
    for j in range(16): o(f"v_mov_b32 v{CC+j}, 0\nv_mov_b32 v{VB+j}, v4")
    o("""v_lshrrev_b32 v3, 5, v0
    v_and_b32 v4, 15, v0
    v_lshlrev_b32 v3, 8, v3
    v_lshl_add_u32 v2, v4, 4, v3
    v_add_u32 v2, 0x10000, v2
    .Lk2_main:
    v_mov_b32 v10, v1
    v_mov_b32 v11, v2
    s_mov_b32 s53, 0""")
    if STAMP: o("s_memtime s[84:85]")
    o(f"ds_read_b128 {r(KB,4)}, v1\nds_read_b128 {r(KB+4,4)}, v1 offset:1024")
    for j in range(16): o(f"v_mov_b32 v{OA+j}, 0")
    for j in range(8): o(f"v_mov_b32 v{P0+8+j}, 0")
    o("s_waitcnt lgkmcnt(1)"); o(mf32(S0, KB, QR, CC)); o("s_waitcnt lgkmcnt(0)\ns_nop 10\n.Lk2_loop:")
    o(f"s_cmp_lg_u32 s53, s49\ns_cbranch_scc1 .Lk2_nb\ns_barrier\ns_mov_b32 s49, s70\ns_mov_b32 s70, -1"); stamp(o, 5); o(".Lk2_nb:\ns_cmp_lg_u32 s53, s67\ns_cbranch_scc1 .Lk2_np\ns_setprio 0\n.Lk2_np:")
    for T in range(UN):
        S, Sn, P, Pp = (S0, S1, P0, P0+8) if T % 2 == 0 else (S1, S0, P0+8, P0)
        o(mf32(Sn, KB+4*((T+1) & 1), QR, CC))
        o(f"ds_read_b128 {r(KB+4*(T&1),4)}, v10 offset:{(T+2)*1024}")
        o(f"s_mov_b64 exec, s[46:47]\nds_read_b128 {r(VB+8*(T&1),4)}, v11 offset:{T*1024}\nds_read_b128 {r(VB+8*(T&1)+4,4)}, v11 offset:{T*1024+512}\ns_mov_b64 exec, -1")
        va = []
        for j in range(8):
            va += [f"v_exp_f32 v{S+2*j}, v{S+2*j}", f"v_exp_f32 v{S+2*j+1}, v{S+2*j+1}"]
            if j > 0: va += [f"v_cvt_pk_bf16_f32 v{P+j-1}, v{S+2*j-2}, v{S+2*j-1}"]
        va += ["s_waitcnt lgkmcnt(0)", f"v_cvt_pk_bf16_f32 v{P+7}, v{S+14}, v{S+15}"]
        Vp = VB+8*((T-1) & 1)
        for i, x in enumerate(va):
            if i == 8: o(mf32(OA, Vp, Pp, OA))
            if i == 16: o(mf32(OA, Vp+4, Pp+4, OA))
            if i == 23 and T == UN-1: o(f"v_add_u32 v10, {UN*1024}, v10\nv_add_u32 v11, {UN*1024}, v11\ns_add_u32 s53, s53, 1\ns_cmp_lg_u32 s53, {64//UN}")
            o(x)
    o("s_cbranch_scc1 .Lk2_loop")
    if STAMP: o("s_memtime s[86:87]")
    stamp(o, 6); o("s_nop 1"); o(mf32(OA, VB+8, P0+8, OA)); o(mf32(OA, VB+12, P0+12, OA)); o("s_nop 11")
    o(f"""s_cmp_lg_u32 s48, 0
    s_cbranch_scc1 .Lk2_fin
    v_add_f32 v3, abs(v{OA}), abs(v{OA+1})""")
    for j in range(2, 8): o(f"v_add_f32 v3, v3, abs(v{OA+j})")
    o(f"""s_mov_b32 s50, {fl(2.0**-80)}
    s_mov_b32 s51, {fl(2.0**80)}
    s_mov_b32 s52, {fl(2.0**120)}
    v_cmp_nle_f32 s[54:55], s50, v{OA+8}
    v_cmp_nge_f32 s[56:57], s51, v{OA+8}
    v_cmp_nge_f32 s[58:59], s52, v3
    s_nop 3
    s_or_b64 s[54:55], s[54:55], s[56:57]
    s_or_b64 s[54:55], s[54:55], s[58:59]
    s_cbranch_scc0 .Lk2_fin
    s_mov_b32 s48, 1
    s_mov_b32 s50, 64
    v_mov_b32 v3, 0xff800000
    v_mov_b32 v4, v1
    .Lk2_mx:
    ds_read_b128 {r(KB,4)}, v4
    v_add_u32 v4, 1024, v4
    s_waitcnt lgkmcnt(0)""")
    o(mf32(S0, KB, QR, "0")); o("s_nop 11")
    for j in range(8): o(f"v_max3_f32 v3, v3, v{S0+2*j}, v{S0+2*j+1}")
    o(f"""s_sub_u32 s50, s50, 1
    s_cmp_lg_u32 s50, 0
    s_cbranch_scc1 .Lk2_mx
    v_xor_b32 v4, 32, v0
    v_lshlrev_b32 v4, 2, v4
    ds_bpermute_b32 v5, v4, v3
    s_waitcnt lgkmcnt(0)
    v_max_f32 v3, v3, v5""")
    for j in range(16): o(f"v_sub_f32 v{CC+j}, 0, v3")
    o(f"""s_branch .Lk2_main
    .Lk2_fin:
    v_rcp_f32 v3, v{OA+8}
    s_add_u32 s44, s44, {OF}""")
    for j in range(8): o(f"v_mul_f32 v{OA+j}, v3, v{OA+j}")
    for j in range(4): o(f"v_cvt_pk_bf16_f32 v{4+j}, v{OA+2*j}, v{OA+2*j+1}")
    o("buffer_store_dwordx4 v[4:7], v1, s[24:27], s44 offen")
    tail(o, name, 1)
    return name, 160
```

```python
import struct
MB = 1 << 20
QF, KF, VF, YO, OF, ZO, HO, TO = 0, 2*MB, 2*MB + 65536, 3*MB, 5*MB, 7*MB, 9*MB, 10*MB
WT = 12*MB + 512*1024
WS_N = 15*MB
def f2u(x): return struct.unpack("<I", struct.pack("<f", x))[0]
def fl(x): return "0x%08x" % f2u(x)
class A:
    def __init__(s): s.l = []
    def __call__(s, txt):
        for x in txt.strip("\n").split("\n"):
            x = x.strip()
            if x: s.l.append(x if x.endswith(":") else "  " + x)
    def text(s): return "\n".join(s.l) + "\n"
def r(a, n): return f"v[{a}:{a+n-1}]"
def mf32(d, a, b, c): return f"v_mfma_f32_32x32x16_bf16 {r(d,16)}, {r(a,4)}, {r(b,4)}, {c if isinstance(c,str) else r(c,16)}"
def mf16(d, a, b, c): return f"v_mfma_f32_16x16x32_bf16 {r(d,4)}, {r(a,4)}, {r(b,4)}, {c if isinstance(c,str) else r(c,4)}"
def srd(o, d, p, n): o(f"s_mov_b32 s{d}, s{p}\ns_mov_b32 s{d+1}, s{p+1}\ns_mov_b32 s{d+2}, {n}\ns_mov_b32 s{d+3}, 0x00020000")
def head(o, name, nwg):
    o(f".p2align 8\n.globl {name}\n.type {name},@function\n{name}:")
    o(f"""s_cmp_ge_u32 s2, {nwg}
    s_cbranch_scc1 .Lend_{name}
    s_load_dwordx16 s[4:19], s[0:1], 0
    s_load_dwordx2 s[20:21], s[0:1], 64
    s_load_dwordx2 s[22:23], s[0:1], 80
    v_lshrrev_b32 v1, 6, v0
    v_and_b32 v0, 63, v0
    v_readfirstlane_b32 s3, v1
    s_and_b32 s40, s2, 7
    s_lshr_b32 s41, s2, 3""")
    if STAMP:
        for i in range(1, 7): o(f"s_mov_b32 s{80+2*i}, 0")
    stamp(o, 0)
import os
STAMP = bool(os.environ.get("STAMP"))
def stamp(o, i):
    if STAMP: o(f"s_memrealtime s[{80+2*i}:{81+2*i}]")
def tail(o, name, kid=0):
    o(f".Lfin_{name}:")
    if STAMP:
        o("s_waitcnt vmcnt(0)"); stamp(o, 7); o("s_waitcnt lgkmcnt(0)\nv_mov_b32 v2, 0")
        for i in range(8): o(f"v_writelane_b32 v2, s{80+2*i}, {i}")
        o(f"s_lshl_b32 s50, s2, 3\ns_add_u32 s50, s50, s3\ns_lshl_b32 s50, s50, 5\ns_add_u32 s50, s50, {12*MB + kid*65536}\ns_mov_b32 s26, {15*MB}\nv_lshlrev_b32 v3, 2, v0\ns_mov_b64 exec, 0xff\nbuffer_store_dword v2, v3, s[24:27], s50 offen")
    o(f".Lend_{name}:\ns_endpgm")
def desc(name, vg):
    return f""".p2align 6
.amdhsa_kernel {name}
  .amdhsa_next_free_vgpr {vg}
  .amdhsa_next_free_sgpr 102
  .amdhsa_accum_offset {vg}
  .amdhsa_group_segment_fixed_size 0
  .amdhsa_kernarg_size 88
  .amdhsa_user_sgpr_count 2
  .amdhsa_user_sgpr_kernarg_segment_ptr 1
  .amdhsa_system_sgpr_workgroup_id_x 1
.end_amdhsa_kernel
"""
def dma(o, voff, s, soff, lds_s, lds_imm):
    o(f"s_add_u32 m0, s{lds_s}, {lds_imm}\ns_nop 0\nbuffer_load_dwordx4 v{voff}, s[{s}:{s+3}], {soff} offen lds")

SLOT = 53248
def ring_gemm(o, tag, issue, nper, step, extra=None):
    for ch in range(3): issue(ch, ch)
    if extra: extra()
    stamp(o, 1)
    for ch in range(4):
        slot = ch % 3
        n = {0: 2*nper, 1: nper, 2: nper, 3: 0}[ch]
        o(f"s_waitcnt vmcnt({n})\ns_barrier")
        stamp(o, 2+ch)
        if ch == 1: issue(3, 0)
        st = step(ch, slot)
        o(st[0][0])
        for ks in range(8):
            nrd = 0
            if ks < 7:
                o(st[ks+1][0]); nrd = sum(1 for x in st[ks+1][0].split("\n") if x.strip().startswith("ds_"))
            o(f"s_waitcnt lgkmcnt({nrd})")
            o(st[ks][1])

US = 24576
PU = int(os.environ.get("PU", 3))
def ring2(o, issue, reads, mms, pre_issued, after=0):
    issued = pre_issued
    for u in range(9):
        if u < 8:
            n = (issued - u - 1)*6 + (after if u < pre_issued else 0)
            o(f"s_waitcnt vmcnt({n}) lgkmcnt(0)\ns_barrier")
            if u in (0, 2, 4, 7): stamp(o, 2 + (0, 2, 4, 7).index(u))
            rd = reads(u, u & 1)
            pend = []
            while issued < min(8, u + 6) and len(pend) < 12: pend += issue(issued); issued += 1
            mm = mms(u-1, (u-1) & 1) if u else [""]*4
            k = (len(pend) + 3)//4
            for ks in range(4):
                o(rd[ks]); o(mm[ks])
                for f in pend[k*ks:k*ks+k]: f()
        else:
            per = sum(1 for x in rd[0].split("\n") if x.strip().startswith("ds_"))
            mm = mms(7, 1)
            for ks in range(4): o(f"s_waitcnt lgkmcnt({min(15, per*(3-ks))})"); o(mm[ks])
class VM:
    def __init__(s, o, pend, every): s.o, s.pend, s.every, s.n, s.cnt, s.tags = o, list(pend), every, 0, 0, {}
    def vm(s, txt, tag=None):
        s.o(txt); s.cnt += 1
        if tag: s.tags[tag] = s.cnt
    def wait(s, tag): s.o(f"s_waitcnt vmcnt({s.cnt - s.tags[tag]})")
    def piece(s):
        if s.pend: s.pend.pop(0)(); s.cnt += 1
    def __call__(s, txt):
        for x in txt.strip("\n").split("\n"):
            s.o(x); s.n += 1
            if s.every and s.n % s.every == 0 and not x.strip().startswith('s_cmp'): s.piece()
```

```python
from gen_common import *
import math
YP = int(os.environ.get("YP", 2)); YE = int(os.environ.get("YE", 5)); WP = int(os.environ.get("WP", 1))
def wtr_addr(o, v, wo_order, perm):
    o(f"""v_lshrrev_b32 v2, 2, v0
    v_and_b32 v2, 3, v2
    v_lshrrev_b32 v3, 5, v0
    v_lshlrev_b32 v4, {2 if wo_order else 3}, v3
    v_add_u32 v4, v4, v2
    v_lshlrev_b32 v{v}, 7, v4
    v_lshrrev_b32 v2, 1, v2
    v_xor_b32 v2, s43, v2
    v_lshl_add_u32 v{v}, v2, 6, v{v}
    v_bfe_u32 v4, v0, 4, 1
    v_and_b32 v5, 3, v0""")
    if perm:
        o(f"""v_and_b32 v6, 1, v5
        v_lshrrev_b32 v5, 1, v5
        v_lshl_add_u32 v5, v6, 2, v5
        v_lshl_add_u32 v5, v4, 1, v5""")
    else: o("v_lshl_add_u32 v5, v4, 2, v5")
    o(f"v_lshl_add_u32 v{v}, v5, 3, v{v}")
def w_dma_addr(o, v):
    o(f"""v_lshrrev_b32 v2, 3, v0
    v_and_b32 v3, 7, v0
    v_lshrrev_b32 v4, 4, v0
    v_and_b32 v4, 1, v4
    v_lshlrev_b32 v4, 2, v4
    v_xor_b32 v3, v3, v4
    v_lshlrev_b32 v3, 4, v3
    v_lshl_add_u32 v{v}, v2, 10, v3
    s_lshl_b32 s50, s44, 7
    s_lshl_b32 s51, s3, 13
    s_add_u32 s50, s50, s51
    v_add_u32 v{v}, s50, v{v}""")
def k1(o):
    name = "k1_kernel"
    head(o, name, 256)
    o("""s_lshr_b32 s45, s41, 3
    s_and_b32 s45, s45, 1
    s_lshl_b32 s46, s40, 1
    s_add_u32 s45, s45, s46
    s_and_b32 s44, s41, 7
    s_lshr_b32 s42, s3, 1
    s_and_b32 s43, s3, 1
    s_lshl_b32 s47, s3, 10
    s_waitcnt lgkmcnt(0)""")
    srd(o, 24, 22, WS_N)
    o("s_cmp_ge_u32 s41, 16\ns_cbranch_scc1 .Lk1_y")
    srd(o, 28, 4, 2*MB); srd(o, 32, 6, 512*1024)
    o("s_and_b32 s48, s44, 1\ns_cmp_eq_u32 s48, 0\ns_cselect_b32 s36, s8, s10\ns_cselect_b32 s37, s9, s11\ns_mov_b32 s38, 16384\ns_mov_b32 s39, 0x00020000")
    o("""v_lshrrev_b32 v2, 3, v0
    s_lshl_b32 s50, s3, 3
    v_add_u32 v2, s50, v2
    v_lshrrev_b32 v3, 1, v2
    v_xor_b32 v3, v3, v0
    v_and_b32 v3, 7, v3
    v_lshlrev_b32 v3, 4, v3
    v_lshl_add_u32 v10, v2, 10, v3
    s_lshl_b32 s50, s45, 17
    v_add_u32 v10, s50, v10
    v_lshlrev_b32 v12, 4, v0
    v_add_u32 v12, s47, v12""")
    w_dma_addr(o, 11)
    def D(v, sd, g, l):
        def f(): o(f"s_mov_b32 s52, {g}"); dma(o, v, sd, "s52", 47, l)
        return f
    def issue(u): return [D(10, 28, m*32768 + u*128, u % 6*US + m*4096) for m in range(4)] + [D(11, 32, u*65536 + m*32768, u % 6*US + 16384 + m*4096) for m in range(2)]
    def extra():
        wtr_addr(o, 13, False, False)
        o("""v_and_b32 v2, 31, v0
        v_lshrrev_b32 v3, 5, v0
        v_bfe_u32 v4, v0, 1, 3
        v_xor_b32 v3, v3, v4
        v_lshlrev_b32 v3, 4, v3
        v_lshl_add_u32 v14, v2, 7, v3
        s_lshl_b32 s50, s42, 13
        v_add_u32 v14, s50, v14
        v_lshrrev_b32 v3, 5, v0
        v_lshrrev_b32 v2, 2, v0
        v_and_b32 v2, 3, v2
        v_lshl_add_u32 v2, v3, 3, v2
        v_and_b32 v3, 3, v0
        v_lshlrev_b32 v3, 3, v3
        v_lshl_add_u32 v15, v2, 5, v3
        v_add_u32 v15, XKV, v15""".replace("XKV", str(6*US)))
    def tables():
        o("""s_lshl_b32 s50, s45, 3
        s_add_u32 s50, s50, s44
        s_cmp_ge_u32 s50, 52
        s_cbranch_scc1 .Lk1_notab
        s_cmp_lg_u32 s3, 0
        s_cbranch_scc1 .Lk1_notab
        s_mul_i32 s51, s50, 43
        s_lshr_b32 s51, s51, 9
        s_mul_i32 s52, s51, 12
        s_sub_u32 s52, s50, s52
        s_and_b32 s53, s52, 3
        s_lshr_b32 s52, s52, 2
        s_lshl_b32 s54, s51, 4
        s_and_b32 s60, s53, 1
        s_lshr_b32 s61, s53, 1
        s_cmp_eq_u32 s51, 4
        s_cbranch_scc1 .Lk1_t32
        s_cmp_eq_u32 s52, 0
        s_cbranch_scc0 .Lk1_ttw""")
        o(f"s_lshl_b32 s55, s60, 5\ns_mov_b32 s56, 3\ns_mov_b32 s57, 4\ns_mov_b32 s58, {fl(1/64)}\ns_mov_b32 s59, s61\ns_mov_b32 s62, 1\ns_branch .Lk1_tgo")
        o(f".Lk1_t32:\ns_lshl_b32 s54, s60, 4\ns_mov_b32 s55, 0\ns_mov_b32 s56, 2\ns_mov_b32 s57, 16\ns_mov_b32 s58, {fl(1/32)}\ns_mov_b32 s59, s61\ns_mov_b32 s62, 1\ns_branch .Lk1_tgo")
        o(f""".Lk1_ttw:
        s_lshl_b32 s55, s61, 4
        s_mov_b32 s63, s54
        s_cmp_eq_u32 s52, 2
        s_cselect_b32 s54, s55, s63
        s_cselect_b32 s55, s63, s55
        s_mov_b32 s56, 2\ns_mov_b32 s57, 4\ns_mov_b32 s58, {fl(1/2048)}\ns_mov_b32 s59, s60\ns_mov_b32 s62, 0
        .Lk1_tgo:
        s_cmp_eq_u32 s59, 0
        s_cselect_b32 s59, 0, {fl(-0.25)}
        v_and_b32 v2, 15, v0
        v_add_u32 v2, s54, v2
        v_cvt_f32_u32 v2, v2
        v_mul_f32 v2, s58, v2
        v_lshrrev_b32 v3, 4, v0
        v_lshlrev_b32 v3, s56, v3
        v_add_u32 v3, s55, v3
        v_add_u32 v4, s57, v3
        v_mov_b32 v5, s59""")
        for e in range(8):
            o(f"v_add_u32 v{20+e}, {e&3}, v{3+(e>>2)}\nv_cvt_f32_u32 v{20+e}, v{20+e}\nv_fma_f32 v{20+e}, v{20+e}, v2, v5\nv_cos_f32 v{20+e}, v{20+e}")
        o("s_cmp_eq_u32 s62, 0\ns_cbranch_scc1 .Lk1_tst")
        for e in range(4): o(f"v_cvt_pk_bf16_f32 v{20+e}, v{20+2*e}, v{21+2*e}")
        o(f""".Lk1_tst:
        s_lshl_b32 s50, s50, 10
        s_add_u32 s50, s50, {TO}
        v_lshlrev_b32 v2, 4, v0
        buffer_store_dwordx4 v[20:23], v2, s[24:27], s50 offen
        .Lk1_notab:""")
    def select():
        o("""s_lshr_b32 s50, s44, 2
        s_cmp_lg_u32 s50, s42
        s_cbranch_scc1 .Lk1_v0
        s_cmp_lg_u32 s48, s43
        s_cbranch_scc1 .Lk1_v0
        s_bfe_u32 s50, s44, 0x10001
        s_lshl_b32 s50, s50, 1
        s_add_u32 s50, s50, s48""")
    FB = lambda st, ks: 80 + 64*st + 16*ks
    def mk(var):
        def reads(u, st):
            o(f"v_add_u32 v16, {u % 6*US}, v14\nv_add_u32 v17, {u % 6*US+16384}, v13")
            for ks in range(1, 4): o(f"v_xor_b32 v{17+ks}, {ks*32}, v16")
            out = []
            for ks in range(4):
                F = FB(st, ks); a = 17+ks if ks else 16
                rd = "".join(f"ds_read_b64_tr_b16 {r(F+2*e,2)}, v17 offset:{(16*ks+4*e)*128}\n" for e in range(2))
                rd += f"ds_read_b128 {r(F+4,4)}, v{a}\nds_read_b128 {r(F+8,4)}, v{a} offset:4096\n"
                if var is not None: rd += "".join(f"ds_read_b64_tr_b16 {r(F+12+2*e,2)}, v15 offset:{(64*u+16*ks+4*e)*32}\n" for e in range(2))
                out.append(rd)
            return out
        def mms(u, st):
            out = []
            for ks in range(4):
                F = FB(st, ks); c0 = u == 0 and ks == 0
                mm = mf32(32, F, F+4, "0" if c0 else 32) + "\n" + mf32(48, F, F+8, "0" if c0 else 48)
                if var is not None:
                    X = F+4+4*(var >> 1)
                    mm += "\n" + (mf32(64, X, F+12, "0" if c0 else 64) if var & 1 else mf32(64, F+12, X, "0" if c0 else 64))
                out.append(mm)
            return out
        return reads, mms
    for ch in range(4): D(12, 36, ch*4096, 6*US + ch*4096)()
    for u in range(PU):
        for f in issue(u): f()
    extra(); select(); stamp(o, 1)
    for v in range(4): o(f"s_cmp_eq_u32 s50, {v}\ns_cbranch_scc1 .Lk1_kv{v}")
    for var in (None, 0, 1, 2, 3):
        o(".Lk1_v0:" if var is None else f".Lk1_kv{var}:")
        ring2(o, issue, *mk(var), PU)
        if var is not None:
            o(f"""s_nop 15
            s_lshl_b32 s50, s45, 2
            s_lshr_b32 s51, s44, 1
            s_add_u32 s50, s50, s51
            s_lshl_b32 s50, s50, 10
            s_add_u32 s50, s50, {VF if var & 1 else KF}""")
            for j in range(8 if var & 1 else 4): o(f"v_cvt_pk_bf16_f32 v{64+j}, v{64+2*j}, v{65+2*j}")
            if var & 1:
                o("""v_bfe_u32 v2, v0, 4, 1
                v_cmp_eq_u32 vcc, 1, v2
                v_lshlrev_b32 v2, 9, v2
                v_lshrrev_b32 v3, 5, v0
                v_lshl_add_u32 v2, v3, 8, v2
                v_and_b32 v3, 15, v0
                v_lshl_add_u32 v2, v3, 4, v2""")
                for j in range(4): o(f"v_cndmask_b32 v{64+j}, v{64+j}, v{68+j}, vcc")
            else: o("v_lshlrev_b32 v2, 4, v0")
            o("buffer_store_dwordx4 v[64:67], v2, s[24:27], s50 offen")
        if var != 3: o("s_branch .Lk1_qepi")
    o(".Lk1_qepi:"); stamp(o, 6)
    o(f"""    s_nop 15
    s_mov_b32 s52, {fl(0.25*math.log2(math.e))}
    s_lshl_b32 s50, s45, 2
    s_lshl_b32 s51, s42, 1
    s_add_u32 s50, s50, s51
    s_lshl_b32 s50, s50, 5
    s_lshl_b32 s51, s44, 2
    s_add_u32 s50, s50, s51
    s_lshl_b32 s51, s43, 1
    s_add_u32 s50, s50, s51
    s_lshl_b32 s50, s50, 10
    s_add_u32 s51, s50, 32768
    v_lshlrev_b32 v2, 4, v0""")
    for st in range(2):
        for j in range(16): o(f"v_mul_f32 v{32+16*st+j}, s52, v{32+16*st+j}")
        for j in range(8): o(f"v_cvt_pk_bf16_f32 v{80+8*st+j}, v{32+16*st+2*j}, v{33+16*st+2*j}")
        for hh in range(2): o(f"buffer_store_dwordx4 {r(80+8*st+4*hh,4)}, v2, s[24:27], s{50+st} offen offset:{1024*hh}")
    tables()
    o(f"s_branch .Lfin_{name}")
    o(".Lk1_y:")
    srd(o, 28, 14, 2*MB); srd(o, 32, 16, 2048*257*2); srd(o, 36, 18, 2048*257*2)
    o("""s_lshr_b32 s50, s45, 3
    s_and_b32 s51, s45, 7
    s_lshl_b32 s53, s50, 10
    s_lshl_b32 s54, s42, 9
    s_add_u32 s53, s53, s54
    s_lshl_b32 s54, s43, 7
    s_add_u32 s53, s53, s54
    s_lshl_b32 s54, s51, 2
    s_add_u32 s53, s53, s54
    s_lshl_b32 s53, s53, 10
    v_lshlrev_b32 v9, 4, v0
    v_add_u32 v10, s53, v9
    s_lshl_b32 s54, s43, 1
    s_add_u32 s54, s54, s42
    s_mul_i32 s55, s54, 8448""")
    o0 = o
    def xp(p, q):
        def f(): o0(f"s_mov_b32 s52, {(256*(q>>2) + 32*(q&3) + p)*1024}"); dma(o0, 10, 28, "s52", 55, (32*p+q)*1056)
        return f
    def wl(tk, j, i):
        def f(): o0(f"s_add_u32 s52, s60, {514*tk + 32896*(16*(j>>2) + (j&3))}\nbuffer_load_short_d16{'_hi' if i else ''} v{160+16*i+8*tk+j}, v8, s[{32+4*i}:{35+4*i}], s52 offen")
        return f
    o = VM(o0, [xp(p, q) for p in range(YP) for q in range(8)], 0)
    for _ in range(8): o.piece()
    for p in range(YP): o.tags[f"p{p}"] = 8*p + 8
    o.every = YE
    o(f"""s_lshl_b32 s56, s45, 3
    s_add_u32 s56, s56, s44
    s_and_b32 s57, s56, 3
    s_lshr_b32 s56, s56, 2
    s_lshl_b32 s56, s56, 3
    s_lshl_b32 s58, s3, 1
    s_add_u32 s56, s56, s58
    s_lshr_b32 s58, s56, 6
    s_lshl_b32 s58, s58, 4
    s_and_b32 s59, s56, 15
    s_add_u32 s58, s58, s59
    s_bfe_u32 s59, s56, 0x20004
    s_lshl_b32 s59, s59, 8
    s_add_u32 s58, s58, s59
    s_mul_i32 s58, s58, 514
    s_lshl_b32 s59, s57, 7
    s_add_u32 s60, s58, s59
    v_lshlrev_b32 v8, 1, v0
    s_lshl_b32 s61, s56, 5
    s_lshl_b32 s59, s57, 19
    s_add_u32 s62, s61, s59
    s_add_u32 s62, s62, {WT}
    s_add_u32 s61, s61, {WT + 256*8192}
    v_and_b32 v193, 3, v0
    v_bfe_u32 v192, v0, 2, 1
    v_lshl_add_u32 v193, v192, 4, v193
    v_mul_u32_u24 v193, 32896, v193
    v_bfe_u32 v192, v0, 3, 1
    v_mul_u32_u24 v192, 514, v192
    v_add3_u32 v193, v193, v192, s58
    v_add_u32 v193, 512, v193
    s_cmp_eq_u32 s57, 0
    s_cselect_b32 s64, 0xffff, 0
    s_mov_b32 s65, 0""")
    o("v_cndmask_b32 v194, -1, v193, s[64:65]")
    o.pend += [wl(tk, j, i) for tk in range(2) for j in range(8) for i in range(2)]
    o.pend += [lambda: o0("buffer_load_short_d16 v192, v194, s[32:35], 0 offen"), lambda: o0("buffer_load_short_d16_hi v193, v194, s[36:39], 0 offen")]
    o(f"""s_lshl_b32 s56, s44, 6
    s_lshl_b32 s57, s3, 4
    s_add_u32 s56, s56, s57
    v_and_b32 v2, 15, v0
    v_add_u32 v12, s56, v2
    v_lshrrev_b32 v3, 1, v12
    v_and_b32 v4, 1, v12
    v_cmp_eq_u32 vcc, 1, v12
    v_mov_b32 v5, 0x100
    v_and_b32 v6, 1, v3
    v_cndmask_b32 v3, v3, v5, vcc
    v_cndmask_b32 v4, v4, 0, vcc
    v_mov_b32 v7, 0x80008000
    v_mul_lo_u32 v7, v7, v6
    v_cvt_f32_u32 v3, v3
    v_mul_f32 v3, {fl(1/512)}, v3
    v_cvt_f32_u32 v4, v4
    v_mul_f32 v4, 0x3e800000, v4
    v_lshrrev_b32 v5, 4, v0
    v_lshlrev_b32 v6, 3, v5
    v_cvt_f32_u32 v6, v6
    v_fma_f32 v4, v6, v3, v4
    v_mul_u32_u24 v14, 1056, v2
    v_lshl_add_u32 v14, v5, 4, v14
    v_lshlrev_b32 v12, 12, v12
    v_lshl_add_u32 v12, v5, 4, v12
    s_lshl_b32 s50, s50, 11
    s_lshl_b32 s51, s51, 8
    s_add_u32 s50, s50, s51
    s_add_u32 s50, s50, {YO}""")
    for ks in range(8):
        for j in range(8): o(f"v_fmamk_f32 v{20+j}, v3, {fl(32.0*ks+j)}, v4")
        for j in range(8): o(f"v_cos_f32 v{20+j}, v{20+j}")
        for j in range(4): o(f"v_cvt_pk_bf16_f32 v{64+4*ks+j}, v{20+2*j}, v{21+2*j}")
        for j in range(4): o(f"v_xor_b32 v{96+4*ks+j}, v7, v{64+4*ks+j}")
    while o.pend: o.piece()
    o.tags["W"] = o.cnt
    o(f"""s_lshl_b32 s56, s45, 3
    s_add_u32 s56, s56, s44
    s_lshl_b32 s56, s56, 2
    s_add_u32 s56, s56, s3
    s_lshr_b32 s57, s56, 5
    s_and_b32 s58, s56, 31
    v_and_b32 v2, 3, v0
    v_bfe_u32 v3, v0, 2, 1
    v_lshl_add_u32 v2, v3, 4, v2
    v_bfe_u32 v3, v0, 3, 2
    v_lshl_add_u32 v2, v3, 2, v2
    s_lshl_b32 s57, s57, 5
    v_add_u32 v2, s57, v2
    v_cvt_f32_u32 v2, v2
    v_mul_f32 v2, {fl(1/512)}, v2
    v_lshrrev_b32 v3, 5, v0
    v_lshlrev_b32 v3, 2, v3
    s_lshl_b32 s59, s58, 3
    v_add_u32 v3, s59, v3
    v_cmp_eq_u32 vcc, 0, v3
    v_mov_b32 v6, {fl(2.0**-19)}
    v_mov_b32 v7, {fl(2.0**-20)}
    v_cndmask_b32 v7, v6, v7, vcc""")
    for jj in range(4):
        o(f"v_add_u32 v4, {jj}, v3\nv_cvt_f32_u32 v4, v4\nv_mul_f32 v{20+2*jj}, v4, v2\nv_add_f32 v{21+2*jj}, 0x3e800000, v{20+2*jj}")
        if jj == 0: o(f"v_mul_f32 v5, {fl(256.0)}, v2\nv_cndmask_b32 v21, v21, v5, vcc")
    for j in range(8): o(f"v_cos_f32 v{20+j}, v{20+j}")
    for j in range(8): o(f"v_mul_f32 v{20+j}, v{7 if j < 2 else 6}, v{20+j}")
    for j in range(4): o(f"v_cvt_pk_bf16_f32 v{28+j}, v{20+2*j}, v{21+2*j}")
    o(f"s_lshl_b32 s56, s56, 10\ns_add_u32 s56, s56, {HO}"); o.vm("buffer_store_dwordx4 v[28:31], v9, s[24:27], s56 offen")
    stamp(o0, 1)
    for p in range(4):
        o.every = 0; o.wait(f"p{p}"); o(f"s_barrier\nv_add_u32 v15, {32*p*1056}, v14"); stamp(o0, 2+p)
        if p + YP < 4: o.pend = [xp(p + YP, q) for q in range(8)]; o.tags[f"p{p+YP}"] = o.cnt + 8; o.every = 8; o.n = 0
        def rd(ks): return "".join(f"ds_read_b128 {r(128+8*(ks&3)+4*a,4)}, v15 offset:{a*16*1056+ks*64}\n" for a in range(2))
        for ks in range(3): o(rd(ks))
        for ks in range(16):
            if ks+3 < 16: o(rd(ks+3))
            o(f"s_waitcnt lgkmcnt({2*min(3, 15-ks)})")
            for a in range(2): o(mf16(32+8*p+4*a, 128+8*(ks&3)+4*a, 64+4*ks, "0" if ks == 0 else 32+8*p+4*a))
        assert not o.pend
        if p == WP:
            o.wait("W"); o("s_mov_b32 s53, 0xffff\nv_lshrrev_b32 v8, 2, v0\nv_lshlrev_b32 v8, 15, v8\nv_and_b32 v2, 3, v0\nv_lshl_add_u32 v8, v2, 4, v8\nv_lshlrev_b32 v2, 2, v0\nv_cndmask_b32 v2, -4, v2, s[64:65]")
            for j in range(16): o(f"v_bfi_b32 v{160+j}, s53, v{160+j}, v{176+j}")
            o("v_bfi_b32 v192, s53, v192, v193")
            for src, dst, x, perm, m in ((160, 176, 1, "[1,0,3,2]", 0x55555555), (176, 160, 2, "[2,3,0,1]", 0x33333333)):
                for hi in range(2):
                    mm_ = m if hi == 0 else (~m & 0xffffffff)
                    o(f"s_mov_b32 vcc_lo, {hex(mm_)}\ns_mov_b32 vcc_hi, {hex(mm_)}\ns_nop 1")
                    for q in range(4):
                        if bool(q & x) != bool(hi): continue
                        for jj in range(4): o(f"v_cndmask_b32_dpp v{dst+4*q+jj}, v{src+4*(q^x)+jj}, v{src+4*q+jj}, vcc quad_perm:{perm} row_mask:0xf bank_mask:0xf")
            for j in range(4): o.vm(f"s_add_u32 s52, s62, {8192*j}\nbuffer_store_dwordx4 {r(160+4*j,4)}, v8, s[24:27], s52 offen")
            o.vm("buffer_store_dword v192, v2, s[24:27], s61 offen")
        if p > 0:
            for j in range(4): o(f"v_cvt_pk_bf16_f32 v{20+j}, v{24+8*p+2*j}, v{25+8*p+2*j}")
            o.vm(f"buffer_store_dwordx4 v[20:23], v12, s[24:27], s50 offen offset:{64*(p-1)}")
    o = o0
    o("s_nop 7"); stamp(o, 6)
    for j in range(4): o(f"v_cvt_pk_bf16_f32 v{24+j}, v{56+2*j}, v{57+2*j}")
    o("buffer_store_dwordx4 v[24:27], v12, s[24:27], s50 offen offset:192")
    tail(o, name)
    return name, 208
```

```python
from gen_common import *
EX = 131072
K2_LDS = EX + 2*9216
UN = 4
PSW = int(os.environ.get("PSW", 48))
PF = int(os.environ.get("PF", 2))
TB2 = int(os.environ.get("TB2", 28))
PRE = int(os.environ.get("PRE", 4)); EVERY = int(os.environ.get("EVERY", 8))
TB = int(os.environ.get("TB", 12)); G0 = (TB + 5)//4
S0, S1, OA, CC, P0, KB, VB, QR = 16, 32, 48, 64, 80, 96, 104, 120
def fft(o0, first):
    X, T64, TW1, TW2, T32, W, NS64, NS32, D = 16, 48, 64, 80, 96, 112, 128, 136, 144
    def mk(g, kv):
        def f(): o0(f"s_add_u32 s69, s68, {KF + kv*65536 + g*4096}"); dma(o0, 1, 24, "s69", 68, kv*65536 + g*4096)
        return f
    o = VM(o0, [mk(g, kv) for g in range(G0, 16) for kv in range(2)] if first else [], 0)
    if first:
        o(f"""v_and_b32 v2, 15, v0
        v_lshrrev_b32 v3, 4, v0
        v_lshlrev_b32 v5, 6, v2
        v_lshl_add_u32 v5, v3, 4, v5
        s_mul_i32 s50, s60, 12288
        s_add_u32 s50, s50, {TO}
        s_add_u32 s51, s50, 4096
        s_add_u32 s52, s50, 8192
        s_mov_b32 s53, {TO+49152}
        s_lshl_b32 s54, s60, 4
        v_add_u32 v7, s54, v2
        v_lshlrev_b32 v8, 5, v0""")
    o(f"""s_lshl_b32 s55, s61, 13
    s_lshl_b32 s56, s60, 11
    s_add_u32 s55, s55, s56
    s_add_u32 s56, s55, {WT}""")
    for p in range(2):
        for t in range(2):
            for ks in range(2): o.vm(f"buffer_load_dwordx4 {r(X+16*p+8*t+4*ks,4)}, v5, s[24:27], s{62+p} offen offset:{2048*ks+1024*t}", "X")
    def tab(b, s, tag):
        for j in range(4): o.vm(f"buffer_load_dwordx4 {r(b+4*j,4)}, v1, s[24:27], s{s} offen offset:{1024*j}", tag)
    if first:
        tab(T64, 50, "X")
        o("s_barrier\ns_setprio 2"); stamp(o0, 1)
        tab(TW1, 51, "T1"); tab(T32, 53, "T1")
    for j in range(2): o.vm(f"buffer_load_dwordx4 {r(W+8+4*j,4)}, v8, s[24:27], s56 offen offset:{16*j}", "W")
    if first:
        tab(TW2, 52, "T2")
        o(f"""v_mul_u32_u24 v9, 144, v2
        v_lshl_add_u32 v9, v3, 3, v9
        s_lshl_b32 s55, s60, 5
        s_add_u32 s55, s55, {EX}
        v_add_u32 v9, s55, v9
        v_lshrrev_b32 v10, 2, v2
        v_lshlrev_b32 v10, 3, v10
        v_and_b32 v11, 3, v2
        v_add_u32 v10, v10, v11
        v_mul_u32_u24 v10, 144, v10
        v_lshl_add_u32 v10, v3, 4, v10
        v_add_u32 v10, {EX}, v10
        v_lshlrev_b32 v11, 6, v7
        v_lshl_add_u32 v11, v3, 4, v11""")
        for _ in range(PRE): o.piece()
    else:
        o("v_add_u32 v9, 9216, v9\nv_add_u32 v10, 9216, v10"); o.tags["T1"] = o.tags["T2"] = o.tags["X"]
    o.wait("X"); o.every = EVERY
    if first:
        for j in range(8): o(f"v_xor_b32 v{NS64+j}, 0x80008000, v{T64+8+j}")
    R_, I_ = D, D+8
    def cplx(dr, di, steps, dataA):
        out = []
        for n, (xr, xi, C, Sr, Si) in enumerate(steps):
            f = (lambda d, x, k, c: mf16(d, x, k, c)) if dataA else (lambda d, x, k, c: mf16(d, k, x, c))
            out += [f(dr, xr, C, "0" if n == 0 else dr), f(di, xi, C, "0" if n == 0 else di), f(dr, xi, Sr, dr), f(di, xr, Si, di)]
        return out
    def inter(a, b):
        for x, y in zip(a, b): o(x); o(y)
    def cmul(c, s, sign, dst):
        for j in range(8): o(f"v_mul_f32 v{dst+j}, v{R_+j}, v{c(j)}\nv_mul_f32 v{dst+8+j}, v{I_+j}, v{c(j)}")
        for j in range(8):
            if sign > 0: o(f"v_fma_f32 v{dst+j}, -v{I_+j}, v{s(j)}, v{dst+j}\nv_fmac_f32 v{dst+8+j}, v{R_+j}, v{s(j)}")
            else: o(f"v_fmac_f32 v{dst+j}, v{I_+j}, v{s(j)}\nv_fma_f32 v{dst+8+j}, -v{R_+j}, v{s(j)}, v{dst+8+j}")
    def pack(src, dst):
        for j in range(8): o(f"v_cvt_pk_bf16_f32 v{dst+j}, v{src+2*j}, v{src+2*j+1}")
    o("s_nop 0")
    inter(*[cplx(R_+4*t, I_+4*t, [(X+8*t+4*k, X+16+8*t+4*k, T64+4*k, T64+8+4*k, NS64+4*k) for k in range(2)], True) for t in range(2)])
    o.wait("T1")
    if first:
        for j in range(8): o(f"v_xor_b32 v{NS32+j}, 0x80008000, v{T32+8+j}")
    else: o("s_nop 7")
    twc = lambda b: (lambda j: b + 8*(j >> 2) + (j & 3)); tws = lambda b: (lambda j: b + 8*(j >> 2) + 4 + (j & 3))
    cmul(twc(TW1), tws(TW1), -1, X); pack(X, X+16); o("s_nop 1")
    inter(*[cplx(R_+4*t, I_+4*t, [(X+16, X+20, T32+4*t, T32+8+4*t, NS32+4*t)], False) for t in range(2)])
    o.wait("W")
    for j in range(8): o(f"v_lshlrev_b32 v{W+j}, 16, v{W+8+j}\nv_and_b32 v{W+8+j}, 0xffff0000, v{W+8+j}")
    cmul(lambda j: W+j, lambda j: W+8+j, +1, X); pack(X, X+16); o("s_nop 1")
    inter(*[cplx(R_+4*t, I_+4*t, [(X+16, X+20, T32+4*t, NS32+4*t, T32+8+4*t)], True) for t in range(2)])
    o.wait("T2"); o("s_nop 7")
    cmul(twc(TW2), tws(TW2), +1, X); pack(X, X+16)
    for p in range(2):
        for t in range(2): o(f"ds_write_b64 v9, {r(X+16+4*p+2*t,2)} offset:{p*4608+t*16*144}")
    while o.pend: o.piece()
    o("s_waitcnt vmcnt(0) lgkmcnt(0)" if first else "s_waitcnt lgkmcnt(0)"); o("s_barrier")
    for t in range(2):
        for p in range(2):
            for ks in range(2): o(f"ds_read_b128 {r(X+16*p+8*t+4*ks,4)}, v10 offset:{p*4608+t*4*144+ks*64}")
    o("s_waitcnt lgkmcnt(0)")
    inter(*[cplx(R_+4*t, I_+4*t, [(X+8*t+4*k, X+16+8*t+4*k, T64+4*k, NS64+4*k, T64+8+4*k) for k in range(2)], True) for t in range(2)])
    o("s_nop 7")
    pack(D, W)
    for p in range(2): o(f"buffer_store_dwordx4 {r(W+4*p,4)}, v11, s[24:27], s{64+p} offen")

def k2(o):
    name = "k2_kernel"
    head(o, name, 256)
    o("s_waitcnt lgkmcnt(0)")
    srd(o, 24, 22, WS_N)
    o(f"""s_lshl_b32 s44, s40, 8
    s_lshl_b32 s45, s41, 3
    s_add_u32 s44, s44, s45
    s_add_u32 s44, s44, s3
    s_lshl_b32 s44, s44, 10
    v_lshlrev_b32 v1, 4, v0
    s_mov_b32 s46, 0xffff
    s_mov_b32 s47, 0xffff
    s_mov_b32 s48, 0
    s_mov_b32 s49, -1
    buffer_load_dwordx4 {r(12,4)}, v1, s[24:27], s44 offen
    s_and_b32 s68, s3, 3
    s_lshl_b32 s68, s68, 10
    s_cmp_lt_u32 s3, 4
    s_cbranch_scc1 .Lk2_fft
    s_setprio 3""")
    for g in range(G0):
        for kv in range(2):
            o(f"s_add_u32 s69, s68, {KF + kv*65536 + g*4096}"); dma(o, 1, 24, "s69", 68, kv*65536 + g*4096)
    o(f"""s_mov_b32 s49, {TB//UN}
    s_cmp_eq_u32 s2, 0
    s_cselect_b32 s70, {TB2//UN}, -1
    s_mov_b32 s67, {PSW//UN}
    s_waitcnt vmcnt(0)
    s_barrier
    s_setprio 1
    s_branch .Lk2_att
    .Lk2_fft:
    s_mov_b32 s67, -1
    s_mov_b32 s60, s3
    s_lshl_b32 s61, s40, 5
    s_add_u32 s61, s61, s41
    s_lshl_b32 s51, s61, 13
    s_add_u32 s62, s51, {YO}
    s_add_u32 s63, s51, {YO+4096}
    s_add_u32 s64, s51, {ZO}
    s_add_u32 s65, s51, {ZO+4096}
    s_cmp_eq_u32 s2, 0
    s_cselect_b32 s63, {WS_N}, s63
    s_cselect_b32 s65, {WS_N}, s65""")
    fft(o, True)
    o(f"""s_cmp_lg_u32 s2, 0
    s_cbranch_scc1 .Lk2_fd
    s_mov_b32 s61, 256
    s_mov_b32 s62, {YO+4096}
    s_mov_b32 s64, {ZO+4096}""")
    fft(o, False)
    o(".Lk2_fd:")
    o("s_setprio 0\n.Lk2_att:"); stamp(o, 4)
    for j in range(4): o(f"v_mov_b32 v{QR+j}, v{12+j}")
    o("v_and_b32 v3, 27, v0\nv_mov_b32 v4, 0x3f803f80\nv_cmp_eq_u32 vcc, 16, v3\nv_cndmask_b32 v4, 0, v4, vcc")
    for j in range(16): o(f"v_mov_b32 v{CC+j}, 0\nv_mov_b32 v{VB+j}, v4")
    o("""v_lshrrev_b32 v3, 5, v0
    v_and_b32 v4, 15, v0
    v_lshlrev_b32 v3, 8, v3
    v_lshl_add_u32 v2, v4, 4, v3
    v_add_u32 v2, 0x10000, v2
    .Lk2_main:
    v_mov_b32 v10, v1
    v_mov_b32 v11, v2
    s_mov_b32 s53, 0""")
    if STAMP: o("s_memtime s[84:85]")
    o(f"ds_read_b128 {r(KB,4)}, v1\nds_read_b128 {r(KB+4,4)}, v1 offset:1024")
    for j in range(16): o(f"v_mov_b32 v{OA+j}, 0")
    for j in range(8): o(f"v_mov_b32 v{P0+8+j}, 0")
    o("s_waitcnt lgkmcnt(1)"); o(mf32(S0, KB, QR, CC)); o("s_waitcnt lgkmcnt(0)\ns_nop 10\n.Lk2_loop:")
    o(f"s_cmp_lg_u32 s53, s49\ns_cbranch_scc1 .Lk2_nb\ns_barrier\ns_mov_b32 s49, s70\ns_mov_b32 s70, -1"); stamp(o, 5); o(".Lk2_nb:\ns_cmp_lg_u32 s53, s67\ns_cbranch_scc1 .Lk2_np\ns_setprio 0")
    if PF:
        srd(o, 32, 12, 512*1024)
        o(f"s_lshl_b32 s50, s41, 14\ns_lshl_b32 s51, s68, 2\ns_add_u32 s50, s50, s51\ns_add_u32 s51, s50, {HO}")
        for j in range(4): o(f"buffer_load_dwordx4 {r(128+4*j,4)}, v1, s[32:35], s50 offen offset:{1024*j}")
        if PF > 1:
            for j in range(4): o(f"buffer_load_dwordx4 {r(144+4*j,4)}, v1, s[24:27], s51 offen offset:{1024*j}")
    o(".Lk2_np:")
    for T in range(UN):
        S, Sn, P, Pp = (S0, S1, P0, P0+8) if T % 2 == 0 else (S1, S0, P0+8, P0)
        o(mf32(Sn, KB+4*((T+1) & 1), QR, CC))
        o(f"ds_read_b128 {r(KB+4*(T&1),4)}, v10 offset:{(T+2)*1024}")
        o(f"s_mov_b64 exec, s[46:47]\nds_read_b128 {r(VB+8*(T&1),4)}, v11 offset:{T*1024}\nds_read_b128 {r(VB+8*(T&1)+4,4)}, v11 offset:{T*1024+512}\ns_mov_b64 exec, -1")
        va = []
        for j in range(8):
            va += [f"v_exp_f32 v{S+2*j}, v{S+2*j}", f"v_exp_f32 v{S+2*j+1}, v{S+2*j+1}"]
            if j > 0: va += [f"v_cvt_pk_bf16_f32 v{P+j-1}, v{S+2*j-2}, v{S+2*j-1}"]
        va += ["s_waitcnt lgkmcnt(0)", f"v_cvt_pk_bf16_f32 v{P+7}, v{S+14}, v{S+15}"]
        Vp = VB+8*((T-1) & 1)
        for i, x in enumerate(va):
            if i == 8: o(mf32(OA, Vp, Pp, OA))
            if i == 16: o(mf32(OA, Vp+4, Pp+4, OA))
            if i == 23 and T == UN-1: o(f"v_add_u32 v10, {UN*1024}, v10\nv_add_u32 v11, {UN*1024}, v11\ns_add_u32 s53, s53, 1\ns_cmp_lg_u32 s53, {64//UN}")
            o(x)
    o("s_cbranch_scc1 .Lk2_loop")
    if STAMP: o("s_memtime s[86:87]")
    stamp(o, 6); o("s_nop 1"); o(mf32(OA, VB+8, P0+8, OA)); o(mf32(OA, VB+12, P0+12, OA)); o("s_nop 11")
    o(f"""s_cmp_lg_u32 s48, 0
    s_cbranch_scc1 .Lk2_fin
    v_add_f32 v3, abs(v{OA}), abs(v{OA+1})""")
    for j in range(2, 8): o(f"v_add_f32 v3, v3, abs(v{OA+j})")
    o(f"""s_mov_b32 s50, {fl(2.0**-80)}
    s_mov_b32 s51, {fl(2.0**80)}
    s_mov_b32 s52, {fl(2.0**120)}
    v_cmp_nle_f32 s[54:55], s50, v{OA+8}
    v_cmp_nge_f32 s[56:57], s51, v{OA+8}
    v_cmp_nge_f32 s[58:59], s52, v3
    s_nop 3
    s_or_b64 s[54:55], s[54:55], s[56:57]
    s_or_b64 s[54:55], s[54:55], s[58:59]
    s_cbranch_scc0 .Lk2_fin
    s_mov_b32 s48, 1
    s_mov_b32 s50, 64
    v_mov_b32 v3, 0xff800000
    v_mov_b32 v4, v1
    .Lk2_mx:
    ds_read_b128 {r(KB,4)}, v4
    v_add_u32 v4, 1024, v4
    s_waitcnt lgkmcnt(0)""")
    o(mf32(S0, KB, QR, "0")); o("s_nop 11")
    for j in range(8): o(f"v_max3_f32 v3, v3, v{S0+2*j}, v{S0+2*j+1}")
    o(f"""s_sub_u32 s50, s50, 1
    s_cmp_lg_u32 s50, 0
    s_cbranch_scc1 .Lk2_mx
    v_xor_b32 v4, 32, v0
    v_lshlrev_b32 v4, 2, v4
    ds_bpermute_b32 v5, v4, v3
    s_waitcnt lgkmcnt(0)
    v_max_f32 v3, v3, v5""")
    for j in range(16): o(f"v_sub_f32 v{CC+j}, 0, v3")
    o(f"""s_branch .Lk2_main
    .Lk2_fin:
    s_waitcnt vmcnt(0)
    v_rcp_f32 v3, v{OA+8}
    s_add_u32 s44, s44, {OF}""")
    for j in range(8): o(f"v_mul_f32 v{OA+j}, v3, v{OA+j}")
    for j in range(4): o(f"v_cvt_pk_bf16_f32 v{4+j}, v{OA+2*j}, v{OA+2*j+1}")
    o("buffer_store_dwordx4 v[4:7], v1, s[24:27], s44 offen")
    tail(o, name, 1)
    return name, 160
```

```python
from gen_common import *
from gen_k1 import wtr_addr, w_dma_addr
def k3(o):
    name = "k3_kernel"
    head(o, name, 256)
    o("""s_lshr_b32 s45, s41, 3
    s_and_b32 s45, s45, 1
    s_lshl_b32 s46, s40, 1
    s_add_u32 s45, s45, s46
    s_and_b32 s44, s41, 7
    s_lshr_b32 s42, s3, 1
    s_and_b32 s43, s3, 1
    s_lshl_b32 s47, s3, 10
    v_lshlrev_b32 v9, 4, v0
    s_waitcnt lgkmcnt(0)""")
    srd(o, 24, 22, WS_N); srd(o, 28, 20, 4*MB)
    o("s_cmp_ge_u32 s41, 16\ns_cbranch_scc1 .Lk3_z")
    def mm(F, c0): return mf32(32, F, F+4, "0" if c0 else 32) + "\n" + mf32(48, F, F+8, "0" if c0 else 48)
    srd(o, 32, 12, 512*1024)
    o("s_lshl_b32 s50, s45, 17\ns_add_u32 s50, s50, s47\nv_add_u32 v10, s50, v9")
    w_dma_addr(o, 11)
    def D(v, sd, g, l):
        def f(): o(f"s_mov_b32 s52, {g}"); dma(o, v, sd, "s52", 47, l)
        return f
    FB = lambda st, ks: 64 + 48*st + 12*ks
    mms = lambda u, st: [mm(FB(st, ks), u == 0 and ks == 0) for ks in range(4)]
    def issue(u): return [D(10, 24, OF + m*32768 + u*4096, u % 6*US + m*4096) for m in range(4)] + [D(11, 32, u*65536 + m*32768, u % 6*US + 16384 + m*4096) for m in range(2)]
    for u in range(PU):
        for f in issue(u): f()
    wtr_addr(o, 13, True, True)
    o("s_lshl_b32 s50, s42, 13\nv_add_u32 v14, s50, v9\ns_mov_b32 s49, 0"); stamp(o, 1)
    def reads(u, st):
        o(f"v_add_u32 v16, {u % 6*US}, v14\nv_add_u32 v17, {u % 6*US+16384}, v13")
        return ["".join(f"ds_read_b64_tr_b16 {r(FB(st,ks)+2*e,2)}, v17 offset:{(16*ks+8*e)*128}\n" for e in range(2)) +
                f"ds_read_b128 {r(FB(st,ks)+4,4)}, v16 offset:{ks*1024}\nds_read_b128 {r(FB(st,ks)+8,4)}, v16 offset:{4096+ks*1024}\n" for ks in range(4)]
    ring2(o, issue, reads, mms, PU)
    o("s_branch .Lk3_epi\n.Lk3_z:")
    o("""v_lshrrev_b32 v2, 4, v0
    v_lshlrev_b32 v3, 2, v2
    v_and_b32 v4, 15, v0
    v_xor_b32 v3, v3, v4
    v_lshlrev_b32 v3, 4, v3
    s_lshl_b32 s50, s3, 2
    v_add_u32 v2, s50, v2
    v_lshl_add_u32 v10, v2, 12, v3
    s_lshl_b32 s50, s45, 8
    v_add_u32 v10, s50, v10
    s_lshl_b32 s50, s44, 16
    s_add_u32 s50, s50, s47
    v_add_u32 v11, s50, v9""")
    def issue(u): return [D(10, 24, ZO + (64*u + 16*m)*4096, u % 6*US + m*4096) for m in range(4)] + [D(11, 24, HO + m*32768 + u*4096, u % 6*US + 16384 + m*4096) for m in range(2)]
    for u in range(PU):
        for f in issue(u): f()
    def extra():
        o("""v_bfe_u32 v2, v0, 2, 2
        v_lshrrev_b32 v3, 5, v0
        v_lshl_add_u32 v3, v3, 3, v2
        v_lshlrev_b32 v3, 8, v3
        v_bfe_u32 v4, v0, 4, 1
        v_lshl_add_u32 v3, v4, 5, v3
        v_and_b32 v4, 3, v0
        v_lshl_add_u32 v3, v4, 3, v3
        s_lshl_b32 s50, s42, 1
        v_xor_b32 v4, s50, v2
        v_lshl_add_u32 v14, v4, 6, v3
        v_xor_b32 v15, 64, v14
        s_lshl_b32 s50, s43, 12
        v_add_u32 v13, s50, v9
        s_mov_b32 s49, 1024""")
    extra(); stamp(o, 1)
    def reads(u, st):
        o(f"v_add_u32 v16, {u % 6*US}, v14\nv_add_u32 v18, {u % 6*US}, v15\nv_add_u32 v17, {u % 6*US+16384}, v13")
        return [f"ds_read_b128 {r(FB(st,ks),4)}, v17 offset:{ks*1024}\n" + "".join(f"ds_read_b64_tr_b16 {r(FB(st,ks)+4+4*s_+2*e,2)}, v{v} offset:{(16*ks+4*e)*256}\n" for s_, v in ((0, 16), (1, 18)) for e in range(2)) for ks in range(4)]
    ring2(o, issue, reads, mms, PU)
    o(".Lk3_epi:"); stamp(o, 6)
    o("""    v_and_b32 v2, 31, v0
    v_lshrrev_b32 v3, 5, v0
    v_lshlrev_b32 v2, 11, v2
    v_lshl_add_u32 v2, v3, 5, v2
    s_lshl_b32 s50, s45, 18
    s_lshl_b32 s51, s42, 17
    s_add_u32 s50, s50, s51
    s_lshl_b32 s51, s44, 7
    s_add_u32 s50, s50, s51
    s_lshl_b32 s51, s43, 6
    s_add_u32 s50, s50, s51
    s_add_u32 s50, s50, s49
    s_add_u32 s51, s50, 65536
    s_nop 7""")
    for st in range(2):
        for j in range(8): o(f"v_cvt_pk_bf16_f32 v{80+8*st+j}, v{32+16*st+2*j}, v{33+16*st+2*j}")
        for hh in range(2): o(f"buffer_store_dwordx4 {r(80+8*st+4*hh,4)}, v2, s[28:31], s{50+st} offen offset:{16*hh}")
    tail(o, name, 2)
    return name, 160
```

```python
from gen_common import *
from gen_k1 import wtr_addr, w_dma_addr
def k3(o):
    name = "k3_kernel"
    head(o, name, 256)
    o("""s_lshr_b32 s45, s41, 3
    s_and_b32 s45, s45, 1
    s_lshl_b32 s46, s40, 1
    s_add_u32 s45, s45, s46
    s_and_b32 s44, s41, 7
    s_lshr_b32 s42, s3, 1
    s_and_b32 s43, s3, 1
    s_lshl_b32 s47, s3, 10
    v_lshlrev_b32 v9, 4, v0
    s_waitcnt lgkmcnt(0)""")
    srd(o, 24, 22, WS_N); srd(o, 28, 20, 4*MB)
    o("s_cmp_ge_u32 s41, 16\ns_cbranch_scc1 .Lk3_z")
    def mm(F, c0): return mf32(32, F, F+4, "0" if c0 else 32) + "\n" + mf32(48, F, F+8, "0" if c0 else 48)
    srd(o, 32, 12, 512*1024)
    o("s_lshl_b32 s50, s45, 17\ns_add_u32 s50, s50, s47\nv_add_u32 v10, s50, v9")
    w_dma_addr(o, 11)
    def D(v, sd, g, l):
        def f(): o(f"s_mov_b32 s52, {g}"); dma(o, v, sd, "s52", 47, l)
        return f
    FB = lambda st, ks: 64 + 48*st + 12*ks
    mms = lambda u, st: [mm(FB(st, ks), u == 0 and ks == 0) for ks in range(4)]
    def issue(u): return [D(10, 24, OF + m*32768 + u*4096, u % 6*US + m*4096) for m in range(4)] + [D(11, 32, u*65536 + m*32768, u % 6*US + 16384 + m*4096) for m in range(2)]
    for u in range(PU):
        for f in issue(u): f()
    wtr_addr(o, 13, True, True)
    o("s_lshl_b32 s50, s42, 13\nv_add_u32 v14, s50, v9\ns_mov_b32 s49, 0"); stamp(o, 1)
    def reads(u, st):
        o(f"v_add_u32 v16, {u % 6*US}, v14\nv_add_u32 v17, {u % 6*US+16384}, v13")
        return ["".join(f"ds_read_b64_tr_b16 {r(FB(st,ks)+2*e,2)}, v17 offset:{(16*ks+8*e)*128}\n" for e in range(2)) +
                f"ds_read_b128 {r(FB(st,ks)+4,4)}, v16 offset:{ks*1024}\nds_read_b128 {r(FB(st,ks)+8,4)}, v16 offset:{4096+ks*1024}\n" for ks in range(4)]
    ring2(o, issue, reads, mms, PU)
    o("s_branch .Lk3_epi\n.Lk3_z:")
    o("""v_lshrrev_b32 v2, 4, v0
    v_lshlrev_b32 v3, 2, v2
    v_and_b32 v4, 15, v0
    v_xor_b32 v3, v3, v4
    v_lshlrev_b32 v3, 4, v3
    s_lshl_b32 s50, s3, 2
    v_add_u32 v2, s50, v2
    v_lshl_add_u32 v10, v2, 12, v3
    s_lshl_b32 s50, s45, 8
    v_add_u32 v10, s50, v10
    s_lshl_b32 s50, s44, 16
    s_add_u32 s50, s50, s47
    v_add_u32 v11, s50, v9""")
    def issue(u): return [D(10, 24, ZO + (64*u + 16*m)*4096, u % 6*US + m*4096) for m in range(4)] + [D(11, 24, HO + m*32768 + u*4096, u % 6*US + 16384 + m*4096) for m in range(2)]
    for u in range(PU):
        for f in issue(u): f()
    def extra():
        o("""v_bfe_u32 v2, v0, 2, 2
        v_lshrrev_b32 v3, 5, v0
        v_lshl_add_u32 v3, v3, 3, v2
        v_lshlrev_b32 v3, 8, v3
        v_bfe_u32 v4, v0, 4, 1
        v_lshl_add_u32 v3, v4, 5, v3
        v_and_b32 v4, 3, v0
        v_lshl_add_u32 v3, v4, 3, v3
        s_lshl_b32 s50, s42, 1
        v_xor_b32 v4, s50, v2
        v_lshl_add_u32 v14, v4, 6, v3
        v_xor_b32 v15, 64, v14
        s_lshl_b32 s50, s43, 12
        v_add_u32 v13, s50, v9
        s_mov_b32 s49, 1024""")
    extra(); stamp(o, 1)
    def reads(u, st):
        o(f"v_add_u32 v16, {u % 6*US}, v14\nv_add_u32 v18, {u % 6*US}, v15\nv_add_u32 v17, {u % 6*US+16384}, v13")
        return [f"ds_read_b128 {r(FB(st,ks),4)}, v17 offset:{ks*1024}\n" + "".join(f"ds_read_b64_tr_b16 {r(FB(st,ks)+4+4*s_+2*e,2)}, v{v} offset:{(16*ks+4*e)*256}\n" for s_, v in ((0, 16), (1, 18)) for e in range(2)) for ks in range(4)]
    ring2(o, issue, reads, mms, PU)
    o(".Lk3_epi:"); stamp(o, 6)
    o(f"""v_and_b32 v2, 31, v0
    v_lshrrev_b32 v3, 5, v0
    v_mul_u32_u24 v2, 144, v2
    v_lshl_add_u32 v2, v3, 5, v2
    s_mul_i32 s50, s42, {64*144}
    s_lshl_b32 s51, s43, 6
    s_add_u32 s50, s50, s51
    s_add_u32 s50, s50, {2*US}
    v_add_u32 v2, s50, v2
    v_lshrrev_b32 v3, 3, v0
    v_and_b32 v4, 7, v0
    v_lshlrev_b32 v4, 4, v4
    v_mul_u32_u24 v5, 144, v3
    s_mul_i32 s50, s3, {32*144}
    s_add_u32 s50, s50, {2*US}
    v_add3_u32 v5, v5, v4, s50
    v_lshl_add_u32 v3, v3, 11, v4
    s_lshl_b32 s50, s45, 18
    s_lshl_b32 s51, s3, 16
    s_add_u32 s50, s50, s51
    s_lshl_b32 s51, s44, 7
    s_add_u32 s50, s50, s51
    s_add_u32 s50, s50, s49""")
    for st in range(2):
        for j in range(8): o(f"v_cvt_pk_bf16_f32 v{80+8*st+j}, v{32+16*st+2*j}, v{33+16*st+2*j}")
        for hh in range(2): o(f"ds_write_b128 v2, {r(80+8*st+4*hh,4)} offset:{st*32*144+16*hh}")
    o("s_waitcnt lgkmcnt(0)\ns_barrier")
    for i in range(4): o(f"ds_read_b128 {r(96+4*i,4)}, v5 offset:{i*8*144}")
    for i in range(4): o(f"s_waitcnt lgkmcnt({3-i})\nbuffer_store_dwordx4 {r(96+4*i,4)}, v3, s[28:31], s50 offen\ns_add_u32 s50, s50, 16384")
    tail(o, name, 2)
    return name, 160
```

```python
import sys
from gen_common import *
from gen_k1 import k1
from gen_k2 import k2, K2_LDS
from gen_k3 import k3
o = A(); ks = [k1(o), k2(o), k3(o)]
hdr = f"""; MQA attention (32 heads sharing K/V) + GFNet spectral filter, three launches (generated by hand-written scripts)
; @launch kernel=k1_kernel grid=(256,1,1) block=(256,1,1) lds={6*US+16384}
; @launch kernel=k2_kernel grid=(256,1,1) block=(512,1,1) lds={K2_LDS}
; @launch kernel=k3_kernel grid=(256,1,1) block=(256,1,1) lds={6*US}
.amdgcn_target "amdgcn-amd-amdhsa--gfx950"
.text
"""
F = dict(zip("TYQ23", os.environ.get("STF", "sc1,,,sc1,").split(",")))
cur = 0
for i, x in enumerate(o.l):
    if x.startswith("k") and x.endswith("_kernel:"): cur += 1
    if "buffer_store" in x and "v3, s[24:27], s50" not in x:
        c = str(cur) if cur > 1 else "Y" if ", v12," in x else "T" if any(t in x for t in (", v8,", "v192", "v[28:31]", "v[20:23]")) else "Q"
        if F[c]: o.l[i] = x + " " + F[c].replace("+", " ")
out = sys.argv[1] if len(sys.argv) > 1 else "concat_heads__grouped_kv_mqa__spectral_gfnet__prompt.s"
open(out, "w").write(hdr + o.text() + '.section .rodata,"a"\n' + "".join(desc(*k) for k in ks))
```

```python
import struct
MB = 1 << 20
QF, KF, VF, YO, OF, ZO, HO, TO = 0, 2*MB, 2*MB + 65536, 3*MB, 5*MB, 7*MB, 9*MB, 10*MB
WT = 12*MB + 512*1024
FL = 11*MB
WS_N = 15*MB
ZS = 4096 + int(__import__('os').environ.get('ZK', 256))
if ZS != 4096: ZO = 16*MB; WS_N = 19*MB
def f2u(x): return struct.unpack("<I", struct.pack("<f", x))[0]
def fl(x): return "0x%08x" % f2u(x)
class A:
    def __init__(s): s.l = []
    def __call__(s, txt):
        for x in txt.strip("\n").split("\n"):
            x = x.strip()
            if x: s.l.append(x if x.endswith(":") else "  " + x)
    def text(s): return "\n".join(s.l) + "\n"
def r(a, n): return f"v[{a}:{a+n-1}]"
def mf32(d, a, b, c): return f"v_mfma_f32_32x32x16_bf16 {r(d,16)}, {r(a,4)}, {r(b,4)}, {c if isinstance(c,str) else r(c,16)}"
def mf16(d, a, b, c): return f"v_mfma_f32_16x16x32_bf16 {r(d,4)}, {r(a,4)}, {r(b,4)}, {c if isinstance(c,str) else r(c,4)}"
def srd(o, d, p, n): o(f"s_mov_b32 s{d}, s{p}\ns_mov_b32 s{d+1}, s{p+1}\ns_mov_b32 s{d+2}, {n}\ns_mov_b32 s{d+3}, 0x00020000")
def head(o, name, nwg):
    o(f".p2align 8\n.globl {name}\n.type {name},@function\n{name}:")
    o(f"""s_cmp_ge_u32 s2, {nwg}
    s_cbranch_scc1 .Lend_{name}
    s_load_dwordx16 s[4:19], s[0:1], 0
    s_load_dwordx2 s[20:21], s[0:1], 64
    s_load_dwordx2 s[22:23], s[0:1], 80
    v_lshrrev_b32 v1, 6, v0
    v_and_b32 v0, 63, v0
    v_readfirstlane_b32 s3, v1
    s_and_b32 s40, s2, 7
    s_lshr_b32 s41, s2, 3""")
    if STAMP:
        for i in range(1, 7): o(f"s_mov_b32 s{80+2*i}, 0")
    stamp(o, 0)
import os
STAMP = bool(os.environ.get("STAMP"))
def stamp(o, i):
    if STAMP: o(f"s_memrealtime s[{80+2*i}:{81+2*i}]")
def tail(o, name, kid=0):
    o(f".Lfin_{name}:")
    if STAMP:
        o("s_waitcnt vmcnt(0)"); stamp(o, 7); o("s_waitcnt lgkmcnt(0)\nv_mov_b32 v2, 0")
        for i in range(8): o(f"v_writelane_b32 v2, s{80+2*i}, {i}")
        o(f"s_lshl_b32 s50, s2, 3\ns_add_u32 s50, s50, s3\ns_lshl_b32 s50, s50, 5\ns_add_u32 s50, s50, {12*MB + kid*65536}\ns_mov_b32 s26, {15*MB}\nv_lshlrev_b32 v3, 2, v0\ns_mov_b64 exec, 0xff\nbuffer_store_dword v2, v3, s[24:27], s50 offen")
    o(f".Lend_{name}:\ns_endpgm")
def desc(name, vg):
    return f""".p2align 6
.amdhsa_kernel {name}
  .amdhsa_next_free_vgpr {vg}
  .amdhsa_next_free_sgpr 102
  .amdhsa_accum_offset {vg}
  .amdhsa_group_segment_fixed_size 0
  .amdhsa_kernarg_size 88
  .amdhsa_user_sgpr_count 2
  .amdhsa_user_sgpr_kernarg_segment_ptr 1
  .amdhsa_system_sgpr_workgroup_id_x 1
.end_amdhsa_kernel
"""
def dma(o, voff, s, soff, lds_s, lds_imm):
    o(f"s_add_u32 m0, s{lds_s}, {lds_imm}\ns_nop 0\nbuffer_load_dwordx4 v{voff}, s[{s}:{s+3}], {soff} offen lds")

SLOT = 53248
def ring_gemm(o, tag, issue, nper, step, extra=None):
    for ch in range(3): issue(ch, ch)
    if extra: extra()
    stamp(o, 1)
    for ch in range(4):
        slot = ch % 3
        n = {0: 2*nper, 1: nper, 2: nper, 3: 0}[ch]
        o(f"s_waitcnt vmcnt({n})\ns_barrier")
        stamp(o, 2+ch)
        if ch == 1: issue(3, 0)
        st = step(ch, slot)
        o(st[0][0])
        for ks in range(8):
            nrd = 0
            if ks < 7:
                o(st[ks+1][0]); nrd = sum(1 for x in st[ks+1][0].split("\n") if x.strip().startswith("ds_"))
            o(f"s_waitcnt lgkmcnt({nrd})")
            o(st[ks][1])

US = 24576
PU = int(os.environ.get("PU", 3))
def ring2(o, issue, reads, mms, pre_issued, after=0, nper=6, stamps=True):
    issued = pre_issued
    for u in range(9):
        if u < 8:
            n = (issued - u - 1)*nper + (after if u < pre_issued else 0)
            o(f"s_waitcnt vmcnt({n}) lgkmcnt(0)\ns_barrier")
            if stamps and u in (0, 2, 4, 7): stamp(o, 2 + (0, 2, 4, 7).index(u))
            rd = reads(u, u & 1)
            pend = []
            while issued < min(8, u + 6) and len(pend) < 2*nper: pend += issue(issued); issued += 1
            mm = mms(u-1, (u-1) & 1) if u else [""]*4
            k = (len(pend) + 3)//4
            for ks in range(4):
                o(rd[ks]); o(mm[ks])
                for f in pend[k*ks:k*ks+k]: f()
        else:
            per = sum(1 for x in rd[0].split("\n") if x.strip().startswith("ds_"))
            mm = mms(7, 1)
            for ks in range(4): o(f"s_waitcnt lgkmcnt({min(15, per*(3-ks))})"); o(mm[ks])
class VM:
    def __init__(s, o, pend, every): s.o, s.pend, s.every, s.n, s.cnt, s.tags = o, list(pend), every, 0, 0, {}
    def vm(s, txt, tag=None):
        s.o(txt); s.cnt += 1
        if tag: s.tags[tag] = s.cnt
    def wait(s, tag): s.o(f"s_waitcnt vmcnt({s.cnt - s.tags[tag]})")
    def piece(s):
        if s.pend: s.pend.pop(0)(); s.cnt += 1
    def __call__(s, txt):
        for x in txt.strip("\n").split("\n"):
            s.o(x); s.n += 1
            if s.every and s.n % s.every == 0 and not x.strip().startswith('s_cmp'): s.piece()
```

```python
from gen_common import *
import math
YP = int(os.environ.get("YP", 2)); YE = int(os.environ.get("YE", 5)); WP = int(os.environ.get("WP", 1))
def wtr_addr(o, v, wo_order, perm):
    o(f"""v_lshrrev_b32 v2, 2, v0
    v_and_b32 v2, 3, v2
    v_lshrrev_b32 v3, 5, v0
    v_lshlrev_b32 v4, {2 if wo_order else 3}, v3
    v_add_u32 v4, v4, v2
    v_lshlrev_b32 v{v}, 7, v4
    v_lshrrev_b32 v2, 1, v2
    v_xor_b32 v2, s43, v2
    v_lshl_add_u32 v{v}, v2, 6, v{v}
    v_bfe_u32 v4, v0, 4, 1
    v_and_b32 v5, 3, v0""")
    if perm:
        o(f"""v_and_b32 v6, 1, v5
        v_lshrrev_b32 v5, 1, v5
        v_lshl_add_u32 v5, v6, 2, v5
        v_lshl_add_u32 v5, v4, 1, v5""")
    else: o("v_lshl_add_u32 v5, v4, 2, v5")
    o(f"v_lshl_add_u32 v{v}, v5, 3, v{v}")
def w_dma_addr(o, v):
    o(f"""v_lshrrev_b32 v2, 3, v0
    v_and_b32 v3, 7, v0
    v_lshrrev_b32 v4, 4, v0
    v_and_b32 v4, 1, v4
    v_lshlrev_b32 v4, 2, v4
    v_xor_b32 v3, v3, v4
    v_lshlrev_b32 v3, 4, v3
    v_lshl_add_u32 v{v}, v2, 10, v3
    s_lshl_b32 s50, s44, 7
    s_lshl_b32 s51, s3, 13
    s_add_u32 s50, s50, s51
    v_add_u32 v{v}, s50, v{v}""")
def k1(o):
    name = "k1_kernel"
    head(o, name, 256)
    o("""s_lshr_b32 s45, s41, 3
    s_and_b32 s45, s45, 1
    s_lshl_b32 s46, s40, 1
    s_add_u32 s45, s45, s46
    s_and_b32 s44, s41, 7
    s_lshr_b32 s42, s3, 1
    s_and_b32 s43, s3, 1
    s_lshl_b32 s47, s3, 10
    s_waitcnt lgkmcnt(0)""")
    srd(o, 24, 22, WS_N)
    o("s_cmp_ge_u32 s41, 16\ns_cbranch_scc1 .Lk1_y")
    srd(o, 28, 4, 2*MB); srd(o, 32, 6, 512*1024)
    o("s_and_b32 s48, s44, 1\ns_cmp_eq_u32 s48, 0\ns_cselect_b32 s36, s8, s10\ns_cselect_b32 s37, s9, s11\ns_mov_b32 s38, 16384\ns_mov_b32 s39, 0x00020000")
    o("""v_lshrrev_b32 v2, 3, v0
    s_lshl_b32 s50, s3, 3
    v_add_u32 v2, s50, v2
    v_lshrrev_b32 v3, 1, v2
    v_xor_b32 v3, v3, v0
    v_and_b32 v3, 7, v3
    v_lshlrev_b32 v3, 4, v3
    v_lshl_add_u32 v10, v2, 10, v3
    s_lshl_b32 s50, s45, 17
    v_add_u32 v10, s50, v10
    v_lshlrev_b32 v12, 4, v0
    v_add_u32 v12, s47, v12""")
    w_dma_addr(o, 11)
    def D(v, sd, g, l):
        def f(): o(f"s_mov_b32 s52, {g}"); dma(o, v, sd, "s52", 47, l)
        return f
    def issue(u): return [D(10, 28, m*32768 + u*128, u % 6*US + m*4096) for m in range(4)] + [D(11, 32, u*65536 + m*32768, u % 6*US + 16384 + m*4096) for m in range(2)]
    def extra():
        wtr_addr(o, 13, False, False)
        o("""v_and_b32 v2, 31, v0
        v_lshrrev_b32 v3, 5, v0
        v_bfe_u32 v4, v0, 1, 3
        v_xor_b32 v3, v3, v4
        v_lshlrev_b32 v3, 4, v3
        v_lshl_add_u32 v14, v2, 7, v3
        s_lshl_b32 s50, s42, 13
        v_add_u32 v14, s50, v14
        v_lshrrev_b32 v3, 5, v0
        v_lshrrev_b32 v2, 2, v0
        v_and_b32 v2, 3, v2
        v_lshl_add_u32 v2, v3, 3, v2
        v_and_b32 v3, 3, v0
        v_lshlrev_b32 v3, 3, v3
        v_lshl_add_u32 v15, v2, 5, v3
        v_add_u32 v15, XKV, v15""".replace("XKV", str(6*US)))
    def tables():
        o(f"""s_cmp_lg_u32 s3, 1
        s_cbranch_scc1 .Lk1_nofl
        v_mov_b32 v4, 0
        s_lshl_b32 s50, s45, 3
        s_add_u32 s50, s50, s44
        s_lshl_b32 s50, s50, 9
        s_add_u32 s50, s50, {FL}
        v_lshlrev_b32 v3, 3, v0
        v_mov_b32 v5, 0
        buffer_store_dwordx2 v[4:5], v3, s[24:27], s50 offen
        .Lk1_nofl:""")
        o("""s_lshl_b32 s50, s45, 3
        s_add_u32 s50, s50, s44
        s_cmp_ge_u32 s50, 52
        s_cbranch_scc1 .Lk1_notab
        s_cmp_lg_u32 s3, 0
        s_cbranch_scc1 .Lk1_notab
        s_mul_i32 s51, s50, 43
        s_lshr_b32 s51, s51, 9
        s_mul_i32 s52, s51, 12
        s_sub_u32 s52, s50, s52
        s_and_b32 s53, s52, 3
        s_lshr_b32 s52, s52, 2
        s_lshl_b32 s54, s51, 4
        s_and_b32 s60, s53, 1
        s_lshr_b32 s61, s53, 1
        s_cmp_eq_u32 s51, 4
        s_cbranch_scc1 .Lk1_t32
        s_cmp_eq_u32 s52, 0
        s_cbranch_scc0 .Lk1_ttw""")
        o(f"s_lshl_b32 s55, s60, 5\ns_mov_b32 s56, 3\ns_mov_b32 s57, 4\ns_mov_b32 s58, {fl(1/64)}\ns_mov_b32 s59, s61\ns_mov_b32 s62, 1\ns_branch .Lk1_tgo")
        o(f".Lk1_t32:\ns_lshl_b32 s54, s60, 4\ns_mov_b32 s55, 0\ns_mov_b32 s56, 2\ns_mov_b32 s57, 16\ns_mov_b32 s58, {fl(1/32)}\ns_mov_b32 s59, s61\ns_mov_b32 s62, 1\ns_branch .Lk1_tgo")
        o(f""".Lk1_ttw:
        s_lshl_b32 s55, s61, 4
        s_mov_b32 s63, s54
        s_cmp_eq_u32 s52, 2
        s_cselect_b32 s54, s55, s63
        s_cselect_b32 s55, s63, s55
        s_mov_b32 s56, 2\ns_mov_b32 s57, 4\ns_mov_b32 s58, {fl(1/2048)}\ns_mov_b32 s59, s60\ns_mov_b32 s62, 0
        .Lk1_tgo:
        s_cmp_eq_u32 s59, 0
        s_cselect_b32 s59, 0, {fl(-0.25)}
        v_and_b32 v2, 15, v0
        v_add_u32 v2, s54, v2
        v_cvt_f32_u32 v2, v2
        v_mul_f32 v2, s58, v2
        v_lshrrev_b32 v3, 4, v0
        v_lshlrev_b32 v3, s56, v3
        v_add_u32 v3, s55, v3
        v_add_u32 v4, s57, v3
        v_mov_b32 v5, s59""")
        for e in range(8):
            o(f"v_add_u32 v{20+e}, {e&3}, v{3+(e>>2)}\nv_cvt_f32_u32 v{20+e}, v{20+e}\nv_fma_f32 v{20+e}, v{20+e}, v2, v5\nv_cos_f32 v{20+e}, v{20+e}")
        o("s_cmp_eq_u32 s62, 0\ns_cbranch_scc1 .Lk1_tst")
        for e in range(4): o(f"v_cvt_pk_bf16_f32 v{20+e}, v{20+2*e}, v{21+2*e}")
        o(f""".Lk1_tst:
        s_lshl_b32 s50, s50, 10
        s_add_u32 s50, s50, {TO}
        v_lshlrev_b32 v2, 4, v0
        buffer_store_dwordx4 v[20:23], v2, s[24:27], s50 offen
        .Lk1_notab:""")
    def select():
        o("""s_lshr_b32 s50, s44, 2
        s_cmp_lg_u32 s50, s42
        s_cbranch_scc1 .Lk1_v0
        s_cmp_lg_u32 s48, s43
        s_cbranch_scc1 .Lk1_v0
        s_bfe_u32 s50, s44, 0x10001
        s_lshl_b32 s50, s50, 1
        s_add_u32 s50, s50, s48""")
    FB = lambda st, ks: 80 + 64*st + 16*ks
    def mk(var):
        def reads(u, st):
            o(f"v_add_u32 v16, {u % 6*US}, v14\nv_add_u32 v17, {u % 6*US+16384}, v13")
            for ks in range(1, 4): o(f"v_xor_b32 v{17+ks}, {ks*32}, v16")
            out = []
            for ks in range(4):
                F = FB(st, ks); a = 17+ks if ks else 16
                rd = "".join(f"ds_read_b64_tr_b16 {r(F+2*e,2)}, v17 offset:{(16*ks+4*e)*128}\n" for e in range(2))
                rd += f"ds_read_b128 {r(F+4,4)}, v{a}\nds_read_b128 {r(F+8,4)}, v{a} offset:4096\n"
                if var is not None: rd += "".join(f"ds_read_b64_tr_b16 {r(F+12+2*e,2)}, v15 offset:{(64*u+16*ks+4*e)*32}\n" for e in range(2))
                out.append(rd)
            return out
        def mms(u, st):
            out = []
            for ks in range(4):
                F = FB(st, ks); c0 = u == 0 and ks == 0
                mm = mf32(32, F, F+4, "0" if c0 else 32) + "\n" + mf32(48, F, F+8, "0" if c0 else 48)
                if var is not None:
                    X = F+4+4*(var >> 1)
                    mm += "\n" + (mf32(64, X, F+12, "0" if c0 else 64) if var & 1 else mf32(64, F+12, X, "0" if c0 else 64))
                out.append(mm)
            return out
        return reads, mms
    for ch in range(4): D(12, 36, ch*4096, 6*US + ch*4096)()
    for u in range(PU):
        for f in issue(u): f()
    extra(); select(); stamp(o, 1)
    for v in range(4): o(f"s_cmp_eq_u32 s50, {v}\ns_cbranch_scc1 .Lk1_kv{v}")
    for var in (None, 0, 1, 2, 3):
        o(".Lk1_v0:" if var is None else f".Lk1_kv{var}:")
        ring2(o, issue, *mk(var), PU)
        if var is not None:
            o(f"""s_nop 15
            s_lshl_b32 s50, s45, 2
            s_lshr_b32 s51, s44, 1
            s_add_u32 s50, s50, s51
            s_lshl_b32 s50, s50, 10
            s_add_u32 s50, s50, {VF if var & 1 else KF}""")
            for j in range(8 if var & 1 else 4): o(f"v_cvt_pk_bf16_f32 v{64+j}, v{64+2*j}, v{65+2*j}")
            if var & 1:
                o("""v_bfe_u32 v2, v0, 4, 1
                v_cmp_eq_u32 vcc, 1, v2
                v_lshlrev_b32 v2, 9, v2
                v_lshrrev_b32 v3, 5, v0
                v_lshl_add_u32 v2, v3, 8, v2
                v_and_b32 v3, 15, v0
                v_lshl_add_u32 v2, v3, 4, v2""")
                for j in range(4): o(f"v_cndmask_b32 v{64+j}, v{64+j}, v{68+j}, vcc")
            else: o("v_lshlrev_b32 v2, 4, v0")
            o("buffer_store_dwordx4 v[64:67], v2, s[24:27], s50 offen")
        if var != 3: o("s_branch .Lk1_qepi")
    o(".Lk1_qepi:"); stamp(o, 6)
    o(f"""    s_nop 15
    s_mov_b32 s52, {fl(0.25*math.log2(math.e))}
    s_lshl_b32 s50, s45, 2
    s_lshl_b32 s51, s42, 1
    s_add_u32 s50, s50, s51
    s_lshl_b32 s50, s50, 5
    s_lshl_b32 s51, s44, 2
    s_add_u32 s50, s50, s51
    s_lshl_b32 s51, s43, 1
    s_add_u32 s50, s50, s51
    s_lshl_b32 s50, s50, 10
    s_add_u32 s51, s50, 32768
    v_lshlrev_b32 v2, 4, v0""")
    for st in range(2):
        for j in range(16): o(f"v_mul_f32 v{32+16*st+j}, s52, v{32+16*st+j}")
        for j in range(8): o(f"v_cvt_pk_bf16_f32 v{80+8*st+j}, v{32+16*st+2*j}, v{33+16*st+2*j}")
        for hh in range(2): o(f"buffer_store_dwordx4 {r(80+8*st+4*hh,4)}, v2, s[24:27], s{50+st} offen offset:{1024*hh}")
    tables()
    o(f"s_branch .Lfin_{name}")
    o(".Lk1_y:")
    srd(o, 28, 14, 2*MB); srd(o, 32, 16, 2048*257*2); srd(o, 36, 18, 2048*257*2)
    o("""s_lshr_b32 s50, s45, 3
    s_and_b32 s51, s45, 7
    s_lshl_b32 s53, s50, 10
    s_lshl_b32 s54, s42, 9
    s_add_u32 s53, s53, s54
    s_lshl_b32 s54, s43, 7
    s_add_u32 s53, s53, s54
    s_lshl_b32 s54, s51, 2
    s_add_u32 s53, s53, s54
    s_lshl_b32 s53, s53, 10
    v_lshlrev_b32 v9, 4, v0
    v_add_u32 v10, s53, v9
    s_lshl_b32 s54, s43, 1
    s_add_u32 s54, s54, s42
    s_mul_i32 s55, s54, 8448""")
    o0 = o
    def xp(p, q):
        def f(): o0(f"s_mov_b32 s52, {(256*(q>>2) + 32*(q&3) + p)*1024}"); dma(o0, 10, 28, "s52", 55, (32*p+q)*1056)
        return f
    def wl(tk, j, i):
        def f(): o0(f"s_add_u32 s52, s60, {514*tk + 32896*(16*(j>>2) + (j&3))}\nbuffer_load_short_d16{'_hi' if i else ''} v{160+16*i+8*tk+j}, v8, s[{32+4*i}:{35+4*i}], s52 offen")
        return f
    o = VM(o0, [xp(p, q) for p in range(YP) for q in range(8)], 0)
    for _ in range(8): o.piece()
    for p in range(YP): o.tags[f"p{p}"] = 8*p + 8
    o.every = YE
    o(f"""s_lshl_b32 s56, s45, 3
    s_add_u32 s56, s56, s44
    s_and_b32 s57, s56, 3
    s_lshr_b32 s56, s56, 2
    s_lshl_b32 s56, s56, 3
    s_lshl_b32 s58, s3, 1
    s_add_u32 s56, s56, s58
    s_lshr_b32 s58, s56, 6
    s_lshl_b32 s58, s58, 4
    s_and_b32 s59, s56, 15
    s_add_u32 s58, s58, s59
    s_bfe_u32 s59, s56, 0x20004
    s_lshl_b32 s59, s59, 8
    s_add_u32 s58, s58, s59
    s_mul_i32 s58, s58, 514
    s_lshl_b32 s59, s57, 7
    s_add_u32 s60, s58, s59
    v_lshlrev_b32 v8, 1, v0
    s_lshl_b32 s61, s56, 5
    s_lshl_b32 s59, s57, 19
    s_add_u32 s62, s61, s59
    s_add_u32 s62, s62, {WT}
    s_add_u32 s61, s61, {WT + 256*8192}
    v_and_b32 v193, 3, v0
    v_bfe_u32 v192, v0, 2, 1
    v_lshl_add_u32 v193, v192, 4, v193
    v_mul_u32_u24 v193, 32896, v193
    v_bfe_u32 v192, v0, 3, 1
    v_mul_u32_u24 v192, 514, v192
    v_add3_u32 v193, v193, v192, s58
    v_add_u32 v193, 512, v193
    s_cmp_eq_u32 s57, 0
    s_cselect_b32 s64, 0xffff, 0
    s_mov_b32 s65, 0""")
    o("v_cndmask_b32 v194, -1, v193, s[64:65]")
    o.pend += [wl(tk, j, i) for tk in range(2) for j in range(8) for i in range(2)]
    o.pend += [lambda: o0("buffer_load_short_d16 v192, v194, s[32:35], 0 offen"), lambda: o0("buffer_load_short_d16_hi v193, v194, s[36:39], 0 offen")]
    o(f"""s_lshl_b32 s56, s44, 6
    s_lshl_b32 s57, s3, 4
    s_add_u32 s56, s56, s57
    v_and_b32 v2, 15, v0
    v_add_u32 v12, s56, v2
    v_lshrrev_b32 v3, 1, v12
    v_and_b32 v4, 1, v12
    v_cmp_eq_u32 vcc, 1, v12
    v_mov_b32 v5, 0x100
    v_and_b32 v6, 1, v3
    v_cndmask_b32 v3, v3, v5, vcc
    v_cndmask_b32 v4, v4, 0, vcc
    v_mov_b32 v7, 0x80008000
    v_mul_lo_u32 v7, v7, v6
    v_cvt_f32_u32 v3, v3
    v_mul_f32 v3, {fl(1/512)}, v3
    v_cvt_f32_u32 v4, v4
    v_mul_f32 v4, 0x3e800000, v4
    v_lshrrev_b32 v5, 4, v0
    v_lshlrev_b32 v6, 3, v5
    v_cvt_f32_u32 v6, v6
    v_fma_f32 v4, v6, v3, v4
    v_mul_u32_u24 v14, 1056, v2
    v_lshl_add_u32 v14, v5, 4, v14
    v_lshlrev_b32 v12, 12, v12
    v_lshl_add_u32 v12, v5, 4, v12
    s_lshl_b32 s50, s50, 11
    s_lshl_b32 s51, s51, 8
    s_add_u32 s50, s50, s51
    s_add_u32 s50, s50, {YO}""")
    for ks in range(8):
        for j in range(8): o(f"v_fmamk_f32 v{20+j}, v3, {fl(32.0*ks+j)}, v4")
        for j in range(8): o(f"v_cos_f32 v{20+j}, v{20+j}")
        for j in range(4): o(f"v_cvt_pk_bf16_f32 v{64+4*ks+j}, v{20+2*j}, v{21+2*j}")
        for j in range(4): o(f"v_xor_b32 v{96+4*ks+j}, v7, v{64+4*ks+j}")
    while o.pend: o.piece()
    o.tags["W"] = o.cnt
    o(f"""s_lshl_b32 s56, s45, 3
    s_add_u32 s56, s56, s44
    s_lshl_b32 s56, s56, 2
    s_add_u32 s56, s56, s3
    s_lshr_b32 s57, s56, 5
    s_and_b32 s58, s56, 31
    v_and_b32 v2, 3, v0
    v_bfe_u32 v3, v0, 2, 1
    v_lshl_add_u32 v2, v3, 4, v2
    v_bfe_u32 v3, v0, 3, 2
    v_lshl_add_u32 v2, v3, 2, v2
    s_lshl_b32 s57, s57, 5
    v_add_u32 v2, s57, v2
    v_cvt_f32_u32 v2, v2
    v_mul_f32 v2, {fl(1/512)}, v2
    v_lshrrev_b32 v3, 5, v0
    v_lshlrev_b32 v3, 2, v3
    s_lshl_b32 s59, s58, 3
    v_add_u32 v3, s59, v3
    v_cmp_eq_u32 vcc, 0, v3
    v_mov_b32 v6, {fl(2.0**-19)}
    v_mov_b32 v7, {fl(2.0**-20)}
    v_cndmask_b32 v7, v6, v7, vcc""")
    for jj in range(4):
        o(f"v_add_u32 v4, {jj}, v3\nv_cvt_f32_u32 v4, v4\nv_mul_f32 v{20+2*jj}, v4, v2\nv_add_f32 v{21+2*jj}, 0x3e800000, v{20+2*jj}")
        if jj == 0: o(f"v_mul_f32 v5, {fl(256.0)}, v2\nv_cndmask_b32 v21, v21, v5, vcc")
    for j in range(8): o(f"v_cos_f32 v{20+j}, v{20+j}")
    for j in range(8): o(f"v_mul_f32 v{20+j}, v{7 if j < 2 else 6}, v{20+j}")
    for j in range(4): o(f"v_cvt_pk_bf16_f32 v{28+j}, v{20+2*j}, v{21+2*j}")
    o(f"s_lshl_b32 s56, s56, 10\ns_add_u32 s56, s56, {HO}"); o.vm("buffer_store_dwordx4 v[28:31], v9, s[24:27], s56 offen")
    stamp(o0, 1)
    for p in range(4):
        o.every = 0; o.wait(f"p{p}"); o(f"s_barrier\nv_add_u32 v15, {32*p*1056}, v14"); stamp(o0, 2+p)
        if p + YP < 4: o.pend = [xp(p + YP, q) for q in range(8)]; o.tags[f"p{p+YP}"] = o.cnt + 8; o.every = 8; o.n = 0
        def rd(ks): return "".join(f"ds_read_b128 {r(128+8*(ks&3)+4*a,4)}, v15 offset:{a*16*1056+ks*64}\n" for a in range(2))
        for ks in range(3): o(rd(ks))
        for ks in range(16):
            if ks+3 < 16: o(rd(ks+3))
            o(f"s_waitcnt lgkmcnt({2*min(3, 15-ks)})")
            for a in range(2): o(mf16(32+8*p+4*a, 128+8*(ks&3)+4*a, 64+4*ks, "0" if ks == 0 else 32+8*p+4*a))
        assert not o.pend
        if p == WP:
            o.wait("W"); o("s_mov_b32 s53, 0xffff\nv_lshrrev_b32 v8, 2, v0\nv_lshlrev_b32 v8, 15, v8\nv_and_b32 v2, 3, v0\nv_lshl_add_u32 v8, v2, 4, v8\nv_lshlrev_b32 v2, 2, v0\nv_cndmask_b32 v2, -4, v2, s[64:65]")
            for j in range(16): o(f"v_bfi_b32 v{160+j}, s53, v{160+j}, v{176+j}")
            o("v_bfi_b32 v192, s53, v192, v193")
            for src, dst, x, perm, m in ((160, 176, 1, "[1,0,3,2]", 0x55555555), (176, 160, 2, "[2,3,0,1]", 0x33333333)):
                for hi in range(2):
                    mm_ = m if hi == 0 else (~m & 0xffffffff)
                    o(f"s_mov_b32 vcc_lo, {hex(mm_)}\ns_mov_b32 vcc_hi, {hex(mm_)}\ns_nop 1")
                    for q in range(4):
                        if bool(q & x) != bool(hi): continue
                        for jj in range(4): o(f"v_cndmask_b32_dpp v{dst+4*q+jj}, v{src+4*(q^x)+jj}, v{src+4*q+jj}, vcc quad_perm:{perm} row_mask:0xf bank_mask:0xf")
            for j in range(4): o.vm(f"s_add_u32 s52, s62, {8192*j}\nbuffer_store_dwordx4 {r(160+4*j,4)}, v8, s[24:27], s52 offen")
            o.vm("buffer_store_dword v192, v2, s[24:27], s61 offen")
        if p > 0:
            for j in range(4): o(f"v_cvt_pk_bf16_f32 v{20+j}, v{24+8*p+2*j}, v{25+8*p+2*j}")
            o.vm(f"buffer_store_dwordx4 v[20:23], v12, s[24:27], s50 offen offset:{64*(p-1)}")
    o = o0
    o("s_nop 7"); stamp(o, 6)
    for j in range(4): o(f"v_cvt_pk_bf16_f32 v{24+j}, v{56+2*j}, v{57+2*j}")
    o("buffer_store_dwordx4 v[24:27], v12, s[24:27], s50 offen offset:192")
    tail(o, name)
    return name, 208
```

```python
from gen_common import *
EX = 131072
K2_LDS = 163840
UN = 4
PSW = int(os.environ.get("PSW", 48))
PF = int(os.environ.get("PF", 2))
TB2 = int(os.environ.get("TB2", 28))
PRE = int(os.environ.get("PRE", 4)); EVERY = int(os.environ.get("EVERY", 8))
TB = int(os.environ.get("TB", 12)); G0 = (TB + 5)//4
S0, S1, OA, CC, P0, KB, VB, QR = 16, 32, 48, 64, 80, 96, 104, 120
def fft(o0, first):
    X, T64, TW1, TW2, T32, W, NS64, NS32, D = 16, 48, 64, 80, 96, 112, 128, 136, 144
    def mk(g, kv):
        def f(): o0(f"s_add_u32 s69, s68, {KF + kv*65536 + g*4096}"); dma(o0, 1, 24, "s69", 68, kv*65536 + g*4096)
        return f
    o = VM(o0, [mk(g, kv) for g in range(G0, 16) for kv in range(2)] if first else [], 0)
    if first:
        o(f"""v_and_b32 v2, 15, v0
        v_lshrrev_b32 v3, 4, v0
        v_lshlrev_b32 v5, 6, v2
        v_lshl_add_u32 v5, v3, 4, v5
        s_mul_i32 s50, s60, 12288
        s_add_u32 s50, s50, {TO}
        s_add_u32 s51, s50, 4096
        s_add_u32 s52, s50, 8192
        s_mov_b32 s53, {TO+49152}
        s_lshl_b32 s54, s60, 4
        v_add_u32 v7, s54, v2
        v_lshlrev_b32 v8, 5, v0""")
    o(f"""s_lshl_b32 s55, s61, 13
    s_lshl_b32 s56, s60, 11
    s_add_u32 s55, s55, s56
    s_add_u32 s56, s55, {WT}""")
    for p in range(2):
        for t in range(2):
            for ks in range(2): o.vm(f"buffer_load_dwordx4 {r(X+16*p+8*t+4*ks,4)}, v5, s[24:27], s{62+p} offen offset:{2048*ks+1024*t}", "X")
    def tab(b, s, tag):
        for j in range(4): o.vm(f"buffer_load_dwordx4 {r(b+4*j,4)}, v1, s[24:27], s{s} offen offset:{1024*j}", tag)
    if first:
        tab(T64, 50, "X")
        o("s_barrier\ns_setprio 2"); stamp(o0, 1)
        tab(TW1, 51, "T1"); tab(T32, 53, "T1")
    for j in range(2): o.vm(f"buffer_load_dwordx4 {r(W+8+4*j,4)}, v8, s[24:27], s56 offen offset:{16*j}", "W")
    if first:
        tab(TW2, 52, "T2")
        o(f"""v_mul_u32_u24 v9, 144, v2
        v_lshl_add_u32 v9, v3, 3, v9
        s_lshl_b32 s55, s60, 5
        s_add_u32 s55, s55, {EX}
        v_add_u32 v9, s55, v9
        v_lshrrev_b32 v10, 2, v2
        v_lshlrev_b32 v10, 3, v10
        v_and_b32 v11, 3, v2
        v_add_u32 v10, v10, v11
        v_mul_u32_u24 v10, 144, v10
        v_lshl_add_u32 v10, v3, 4, v10
        v_add_u32 v10, {EX}, v10
        v_lshlrev_b32 v11, 6, v7
        v_lshl_add_u32 v11, v3, 4, v11""")
        for _ in range(PRE): o.piece()
    else:
        o("v_add_u32 v9, 9216, v9\nv_add_u32 v10, 9216, v10"); o.tags["T1"] = o.tags["T2"] = o.tags["X"]
    o.wait("X"); o.every = EVERY
    if first:
        for j in range(8): o(f"v_xor_b32 v{NS64+j}, 0x80008000, v{T64+8+j}")
    R_, I_ = D, D+8
    def cplx(dr, di, steps, dataA):
        out = []
        for n, (xr, xi, C, Sr, Si) in enumerate(steps):
            f = (lambda d, x, k, c: mf16(d, x, k, c)) if dataA else (lambda d, x, k, c: mf16(d, k, x, c))
            out += [f(dr, xr, C, "0" if n == 0 else dr), f(di, xi, C, "0" if n == 0 else di), f(dr, xi, Sr, dr), f(di, xr, Si, di)]
        return out
    def inter(a, b):
        for x, y in zip(a, b): o(x); o(y)
    def cmul(c, s, sign, dst):
        for j in range(8): o(f"v_mul_f32 v{dst+j}, v{R_+j}, v{c(j)}\nv_mul_f32 v{dst+8+j}, v{I_+j}, v{c(j)}")
        for j in range(8):
            if sign > 0: o(f"v_fma_f32 v{dst+j}, -v{I_+j}, v{s(j)}, v{dst+j}\nv_fmac_f32 v{dst+8+j}, v{R_+j}, v{s(j)}")
            else: o(f"v_fmac_f32 v{dst+j}, v{I_+j}, v{s(j)}\nv_fma_f32 v{dst+8+j}, -v{R_+j}, v{s(j)}, v{dst+8+j}")
    def pack(src, dst):
        for j in range(8): o(f"v_cvt_pk_bf16_f32 v{dst+j}, v{src+2*j}, v{src+2*j+1}")
    o("s_nop 0")
    inter(*[cplx(R_+4*t, I_+4*t, [(X+8*t+4*k, X+16+8*t+4*k, T64+4*k, T64+8+4*k, NS64+4*k) for k in range(2)], True) for t in range(2)])
    o.wait("T1")
    if first:
        for j in range(8): o(f"v_xor_b32 v{NS32+j}, 0x80008000, v{T32+8+j}")
    else: o("s_nop 7")
    twc = lambda b: (lambda j: b + 8*(j >> 2) + (j & 3)); tws = lambda b: (lambda j: b + 8*(j >> 2) + 4 + (j & 3))
    cmul(twc(TW1), tws(TW1), -1, X); pack(X, X+16); o("s_nop 1")
    inter(*[cplx(R_+4*t, I_+4*t, [(X+16, X+20, T32+4*t, T32+8+4*t, NS32+4*t)], False) for t in range(2)])
    o.wait("W")
    for j in range(8): o(f"v_lshlrev_b32 v{W+j}, 16, v{W+8+j}\nv_and_b32 v{W+8+j}, 0xffff0000, v{W+8+j}")
    cmul(lambda j: W+j, lambda j: W+8+j, +1, X); pack(X, X+16); o("s_nop 1")
    inter(*[cplx(R_+4*t, I_+4*t, [(X+16, X+20, T32+4*t, NS32+4*t, T32+8+4*t)], True) for t in range(2)])
    o.wait("T2"); o("s_nop 7")
    cmul(twc(TW2), tws(TW2), +1, X); pack(X, X+16)
    for p in range(2):
        for t in range(2): o(f"ds_write_b64 v9, {r(X+16+4*p+2*t,2)} offset:{p*4608+t*16*144}")
    while o.pend: o.piece()
    o("s_waitcnt vmcnt(0) lgkmcnt(0)" if first else "s_waitcnt lgkmcnt(0)"); o("s_barrier")
    for t in range(2):
        for p in range(2):
            for ks in range(2): o(f"ds_read_b128 {r(X+16*p+8*t+4*ks,4)}, v10 offset:{p*4608+t*4*144+ks*64}")
    o("s_waitcnt lgkmcnt(0)")
    inter(*[cplx(R_+4*t, I_+4*t, [(X+8*t+4*k, X+16+8*t+4*k, T64+4*k, NS64+4*k, T64+8+4*k) for k in range(2)], True) for t in range(2)])
    o("s_nop 7")
    pack(D, W)
    for p in range(2): o(f"buffer_store_dwordx4 {r(W+4*p,4)}, v11, s[24:27], s{64+p} offen")

def k2(o):
    name = "k2_kernel"
    head(o, name, 256)
    o("s_waitcnt lgkmcnt(0)")
    srd(o, 24, 22, WS_N)
    o(f"""s_lshl_b32 s44, s40, 8
    s_lshl_b32 s45, s41, 3
    s_add_u32 s44, s44, s45
    s_add_u32 s44, s44, s3
    s_lshl_b32 s44, s44, 10
    v_lshlrev_b32 v1, 4, v0
    s_mov_b32 s46, 0xffff
    s_mov_b32 s47, 0xffff
    s_mov_b32 s48, 0
    s_mov_b32 s49, -1
    buffer_load_dwordx4 {r(12,4)}, v1, s[24:27], s44 offen
    s_and_b32 s68, s3, 3
    s_lshl_b32 s68, s68, 10
    s_cmp_lt_u32 s3, 4
    s_cbranch_scc1 .Lk2_fft
    s_setprio 3""")
    for g in range(G0):
        for kv in range(2):
            o(f"s_add_u32 s69, s68, {KF + kv*65536 + g*4096}"); dma(o, 1, 24, "s69", 68, kv*65536 + g*4096)
    o(f"""s_mov_b32 s49, {TB//UN}
    s_cmp_eq_u32 s2, 0
    s_cselect_b32 s70, {TB2//UN}, -1
    s_mov_b32 s67, {PSW//UN}
    s_waitcnt vmcnt(0)
    s_barrier
    s_setprio 1
    s_branch .Lk2_att
    .Lk2_fft:
    s_mov_b32 s67, 2
    s_mov_b32 s60, s3
    s_lshl_b32 s61, s40, 5
    s_add_u32 s61, s61, s41
    s_lshl_b32 s51, s61, 13
    s_add_u32 s62, s51, {YO}
    s_add_u32 s63, s51, {YO+4096}
    s_add_u32 s64, s51, {ZO}
    s_add_u32 s65, s51, {ZO+4096}
    s_cmp_eq_u32 s2, 0
    s_cselect_b32 s63, {WS_N}, s63
    s_cselect_b32 s65, {WS_N}, s65""")
    fft(o, True)
    o(f"""s_cmp_lg_u32 s2, 0
    s_cbranch_scc1 .Lk2_fd
    s_mov_b32 s61, 256
    s_mov_b32 s62, {YO+4096}
    s_mov_b32 s64, {ZO+4096}""")
    fft(o, False)
    o(".Lk2_fd:")
    o("s_setprio 0\n.Lk2_att:"); stamp(o, 4)
    for j in range(4): o(f"v_mov_b32 v{QR+j}, v{12+j}")
    o("v_and_b32 v3, 27, v0\nv_mov_b32 v4, 0x3f803f80\nv_cmp_eq_u32 vcc, 16, v3\nv_cndmask_b32 v4, 0, v4, vcc")
    for j in range(16): o(f"v_mov_b32 v{CC+j}, 0\nv_mov_b32 v{VB+j}, v4")
    o("""v_lshrrev_b32 v3, 5, v0
    v_and_b32 v4, 15, v0
    v_lshlrev_b32 v3, 8, v3
    v_lshl_add_u32 v2, v4, 4, v3
    v_add_u32 v2, 0x10000, v2
    .Lk2_main:
    v_mov_b32 v10, v1
    v_mov_b32 v11, v2
    s_mov_b32 s53, 0""")
    if STAMP: o("s_memtime s[84:85]")
    o(f"ds_read_b128 {r(KB,4)}, v1\nds_read_b128 {r(KB+4,4)}, v1 offset:1024")
    for j in range(16): o(f"v_mov_b32 v{OA+j}, 0")
    for j in range(8): o(f"v_mov_b32 v{P0+8+j}, 0")
    o("s_waitcnt lgkmcnt(1)"); o(mf32(S0, KB, QR, CC)); o("s_waitcnt lgkmcnt(0)\ns_nop 10\n.Lk2_loop:")
    o(f"s_cmp_lg_u32 s53, s49\ns_cbranch_scc1 .Lk2_nb\ns_barrier\ns_mov_b32 s49, s70\ns_mov_b32 s70, -1"); stamp(o, 5); o(".Lk2_nb:\ns_cmp_lg_u32 s53, s67\ns_cbranch_scc1 .Lk2_np\ns_mov_b32 s67, -1\ns_cmp_ge_u32 s3, 4\ns_cbranch_scc1 .Lk2_pf")
    o(f"""s_and_b32 s50, s2, 15
    s_lshl_b32 s50, s50, 9
    s_add_u32 s50, s50, {FL + 256}
    v_mov_b32 v128, 1
    v_mov_b32 v129, 0
    s_waitcnt vmcnt(0)
    s_mov_b64 exec, 1
    buffer_atomic_add v128, v129, s[24:27], s50 offen sc1
    s_mov_b64 exec, -1
    s_branch .Lk2_np
    .Lk2_pf:
    s_setprio 0""")
    if PF:
        srd(o, 32, 12, 512*1024)
        o(f"s_lshl_b32 s50, s41, 14\ns_lshl_b32 s51, s68, 2\ns_add_u32 s50, s50, s51\ns_add_u32 s51, s50, {HO}")
        for j in range(4): o(f"buffer_load_dwordx4 {r(128+4*j,4)}, v1, s[32:35], s50 offen offset:{1024*j}")
        if PF > 1:
            for j in range(4): o(f"buffer_load_dwordx4 {r(144+4*j,4)}, v1, s[24:27], s51 offen offset:{1024*j}")
    o(".Lk2_np:")
    for T in range(UN):
        S, Sn, P, Pp = (S0, S1, P0, P0+8) if T % 2 == 0 else (S1, S0, P0+8, P0)
        o(mf32(Sn, KB+4*((T+1) & 1), QR, CC))
        o(f"ds_read_b128 {r(KB+4*(T&1),4)}, v10 offset:{(T+2)*1024}")
        o(f"s_mov_b64 exec, s[46:47]\nds_read_b128 {r(VB+8*(T&1),4)}, v11 offset:{T*1024}\nds_read_b128 {r(VB+8*(T&1)+4,4)}, v11 offset:{T*1024+512}\ns_mov_b64 exec, -1")
        va = []
        for j in range(8):
            va += [f"v_exp_f32 v{S+2*j}, v{S+2*j}", f"v_exp_f32 v{S+2*j+1}, v{S+2*j+1}"]
            if j > 0: va += [f"v_cvt_pk_bf16_f32 v{P+j-1}, v{S+2*j-2}, v{S+2*j-1}"]
        va += ["s_waitcnt lgkmcnt(0)", f"v_cvt_pk_bf16_f32 v{P+7}, v{S+14}, v{S+15}"]
        Vp = VB+8*((T-1) & 1)
        for i, x in enumerate(va):
            if i == 8: o(mf32(OA, Vp, Pp, OA))
            if i == 16: o(mf32(OA, Vp+4, Pp+4, OA))
            if i == 23 and T == UN-1: o(f"v_add_u32 v10, {UN*1024}, v10\nv_add_u32 v11, {UN*1024}, v11\ns_add_u32 s53, s53, 1\ns_cmp_lg_u32 s53, {64//UN}")
            o(x)
    o("s_cbranch_scc1 .Lk2_loop")
    if STAMP: o("s_memtime s[86:87]")
    stamp(o, 6); o("s_nop 1"); o(mf32(OA, VB+8, P0+8, OA)); o(mf32(OA, VB+12, P0+12, OA)); o("s_nop 11")
    o(f"""s_cmp_lg_u32 s48, 0
    s_cbranch_scc1 .Lk2_fin
    v_add_f32 v3, abs(v{OA}), abs(v{OA+1})""")
    for j in range(2, 8): o(f"v_add_f32 v3, v3, abs(v{OA+j})")
    o(f"""s_mov_b32 s50, {fl(2.0**-80)}
    s_mov_b32 s51, {fl(2.0**80)}
    s_mov_b32 s52, {fl(2.0**120)}
    v_cmp_nle_f32 s[54:55], s50, v{OA+8}
    v_cmp_nge_f32 s[56:57], s51, v{OA+8}
    v_cmp_nge_f32 s[58:59], s52, v3
    s_nop 3
    s_or_b64 s[54:55], s[54:55], s[56:57]
    s_or_b64 s[54:55], s[54:55], s[58:59]
    s_cbranch_scc0 .Lk2_fin
    s_mov_b32 s48, 1
    s_mov_b32 s50, 64
    v_mov_b32 v3, 0xff800000
    v_mov_b32 v4, v1
    .Lk2_mx:
    ds_read_b128 {r(KB,4)}, v4
    v_add_u32 v4, 1024, v4
    s_waitcnt lgkmcnt(0)""")
    o(mf32(S0, KB, QR, "0")); o("s_nop 11")
    for j in range(8): o(f"v_max3_f32 v3, v3, v{S0+2*j}, v{S0+2*j+1}")
    o(f"""s_sub_u32 s50, s50, 1
    s_cmp_lg_u32 s50, 0
    s_cbranch_scc1 .Lk2_mx
    v_xor_b32 v4, 32, v0
    v_lshlrev_b32 v4, 2, v4
    ds_bpermute_b32 v5, v4, v3
    s_waitcnt lgkmcnt(0)
    v_max_f32 v3, v3, v5""")
    for j in range(16): o(f"v_sub_f32 v{CC+j}, 0, v3")
    o(f"""s_branch .Lk2_main
    .Lk2_fin:
    s_waitcnt vmcnt(0)
    v_rcp_f32 v3, v{OA+8}
    s_add_u32 s44, s44, {OF}""")
    for j in range(8): o(f"v_mul_f32 v{OA+j}, v3, v{OA+j}")
    for j in range(4): o(f"v_cvt_pk_bf16_f32 v{4+j}, v{OA+2*j}, v{OA+2*j+1}")
    o("buffer_store_dwordx4 v[4:7], v1, s[24:27], s44 offen")
    from gen_k3 import k3f
    k3f(o, name)
    tail(o, name, 1)
    return name, 160
```

```python
from gen_common import *
from gen_k1 import wtr_addr, w_dma_addr
DS, WB = 16384, 6*16384
PU3 = int(os.environ.get("PU3", 6))
def k3f(o, name):
    o("s_waitcnt vmcnt(0)\ns_barrier\ns_setprio 0"); stamp(o, 1)
    o(f"""s_cmp_lg_u32 s3, 0
    s_cbranch_scc1 .Lk3_na
    s_lshl_b32 s50, s40, 1
    s_lshr_b32 s51, s41, 4
    s_add_u32 s50, s50, s51
    s_lshl_b32 s50, s50, 12
    s_add_u32 s50, s50, {FL}
    v_mov_b32 v2, 1
    v_lshlrev_b32 v3, 9, v0
    s_mov_b64 exec, 0xff
    buffer_atomic_add v2, v3, s[24:27], s50 offen sc1
    s_mov_b64 exec, -1
    .Lk3_na:
    s_mov_b32 s71, s3
    s_and_b32 s3, s3, 3""")
    def sync(tag, wl, zrole):
        o(f"s_cmp_lt_u32 s71, 4\ns_cbranch_scc1 .Lk3_c{tag}")
        for f in wl: f()
        o(f"""s_waitcnt vmcnt(0)
        s_barrier
        s_mov_b32 s3, s71
        s_branch .Lfin_{name}
        .Lk3_c{tag}:
        s_cmp_lg_u32 s71, 0
        s_cbranch_scc1 .Lk3_b{tag}
        s_mov_b32 s50, {FL + (256 if zrole else 0)}
        s_mov_b32 s51, 0x40000""")
        o("v_and_b32 v2, 15, v0\nv_lshlrev_b32 v2, 9, v2" if zrole else "s_lshl_b32 s52, s45, 3\ns_add_u32 s52, s52, s44\ns_lshl_b32 s52, s52, 9\nv_mov_b32 v2, s52")
        o(f""".Lk3_p{tag}:
        buffer_load_dword v3, v2, s[24:27], s50 offen sc1
        s_sub_u32 s51, s51, 1
        s_cbranch_scc1 .Lk3_b{tag}
        s_waitcnt vmcnt(0)
        v_cmp_gt_u32 vcc, {64 if zrole else 16}, v3
        s_cbranch_vccnz .Lk3_p{tag}
        .Lk3_b{tag}:
        s_waitcnt vmcnt(0)
        s_barrier""")
        stamp(o, 5)
    o("""s_lshr_b32 s45, s41, 3
    s_and_b32 s45, s45, 1
    s_lshl_b32 s46, s40, 1
    s_add_u32 s45, s45, s46
    s_and_b32 s44, s41, 7
    s_lshr_b32 s42, s3, 1
    s_and_b32 s43, s3, 1
    s_lshl_b32 s47, s3, 10
    v_lshlrev_b32 v9, 4, v0""")
    srd(o, 28, 20, 4*MB)
    o("s_cmp_ge_u32 s41, 16\ns_cbranch_scc1 .Lk3_z")
    def mm(F, c0): return mf32(32, F, F+4, "0" if c0 else 32) + "\n" + mf32(48, F, F+8, "0" if c0 else 48)
    srd(o, 32, 12, 512*1024)
    o("s_lshl_b32 s50, s45, 17\ns_add_u32 s50, s50, s47\nv_add_u32 v10, s50, v9")
    w_dma_addr(o, 11)
    def D(v, sd, g, l):
        def f(): o(f"s_mov_b32 s52, {g}"); dma(o, v, sd, "s52", 47, l)
        return f
    FB = lambda st, ks: 64 + 48*st + 12*ks
    mms = lambda u, st: [mm(FB(st, ks), u == 0 and ks == 0) for ks in range(4)]
    def issue(u): return [D(10, 24, OF + m*32768 + u*4096, u % 6*DS + m*4096) for m in range(4)]
    wtr_addr(o, 13, True, True)
    o("s_lshl_b32 s50, s42, 13\nv_add_u32 v14, s50, v9\ns_mov_b32 s49, 0")
    sync("o", [D(11, 32, u*65536 + m*32768, WB + u*8192 + m*4096) for u in range(8) for m in range(2)], False)
    for u in range(PU3):
        for f in issue(u): f()
    def reads(u, st):
        o(f"v_add_u32 v16, {u % 6*DS}, v14\nv_add_u32 v17, {WB + u*8192}, v13")
        return ["".join(f"ds_read_b64_tr_b16 {r(FB(st,ks)+2*e,2)}, v17 offset:{(16*ks+8*e)*128}\n" for e in range(2)) +
                f"ds_read_b128 {r(FB(st,ks)+4,4)}, v16 offset:{ks*1024}\nds_read_b128 {r(FB(st,ks)+8,4)}, v16 offset:{4096+ks*1024}\n" for ks in range(4)]
    ring2(o, issue, reads, mms, PU3, 0, 4, False)
    o("s_branch .Lk3_epi\n.Lk3_z:")
    o("""v_lshrrev_b32 v2, 4, v0
    v_lshlrev_b32 v3, 2, v2
    v_and_b32 v4, 15, v0
    v_xor_b32 v3, v3, v4
    v_lshlrev_b32 v3, 4, v3
    s_lshl_b32 s50, s3, 2
    v_add_u32 v2, s50, v2
    v_lshl_add_u32 v10, v2, 12, v3
    s_lshl_b32 s50, s45, 8
    v_add_u32 v10, s50, v10
    s_lshl_b32 s50, s44, 16
    s_add_u32 s50, s50, s47
    v_add_u32 v11, s50, v9""")
    def issue(u): return [D(10, 24, ZO + (64*u + 16*m)*4096, u % 6*DS + m*4096) for m in range(4)]
    def extra():
        o("""v_bfe_u32 v2, v0, 2, 2
        v_lshrrev_b32 v3, 5, v0
        v_lshl_add_u32 v3, v3, 3, v2
        v_lshlrev_b32 v3, 8, v3
        v_bfe_u32 v4, v0, 4, 1
        v_lshl_add_u32 v3, v4, 5, v3
        v_and_b32 v4, 3, v0
        v_lshl_add_u32 v3, v4, 3, v3
        s_lshl_b32 s50, s42, 1
        v_xor_b32 v4, s50, v2
        v_lshl_add_u32 v14, v4, 6, v3
        v_xor_b32 v15, 64, v14
        s_lshl_b32 s50, s43, 12
        v_add_u32 v13, s50, v9
        s_mov_b32 s49, 1024""")
    extra()
    sync("z", [D(11, 24, HO + m*32768 + u*4096, WB + u*8192 + m*4096) for u in range(8) for m in range(2)], True)
    for u in range(PU3):
        for f in issue(u): f()
    def reads(u, st):
        o(f"v_add_u32 v16, {u % 6*DS}, v14\nv_add_u32 v18, {u % 6*DS}, v15\nv_add_u32 v17, {WB + u*8192}, v13")
        return [f"ds_read_b128 {r(FB(st,ks),4)}, v17 offset:{ks*1024}\n" + "".join(f"ds_read_b64_tr_b16 {r(FB(st,ks)+4+4*s_+2*e,2)}, v{v} offset:{(16*ks+4*e)*256}\n" for s_, v in ((0, 16), (1, 18)) for e in range(2)) for ks in range(4)]
    ring2(o, issue, reads, mms, PU3, 0, 4, False)
    o(".Lk3_epi:"); stamp(o, 4)
    o(f"""v_and_b32 v2, 31, v0
    v_lshrrev_b32 v3, 5, v0
    v_mul_u32_u24 v2, 144, v2
    v_lshl_add_u32 v2, v3, 5, v2
    s_mul_i32 s50, s42, {64*144}
    s_lshl_b32 s51, s43, 6
    s_add_u32 s50, s50, s51
    s_add_u32 s50, s50, {2*DS}
    v_add_u32 v2, s50, v2
    v_lshrrev_b32 v3, 3, v0
    v_and_b32 v4, 7, v0
    v_lshlrev_b32 v4, 4, v4
    v_mul_u32_u24 v5, 144, v3
    s_mul_i32 s50, s3, {32*144}
    s_add_u32 s50, s50, {2*DS}
    v_add3_u32 v5, v5, v4, s50
    v_lshl_add_u32 v3, v3, 11, v4
    s_lshl_b32 s50, s45, 18
    s_lshl_b32 s51, s3, 16
    s_add_u32 s50, s50, s51
    s_lshl_b32 s51, s44, 7
    s_add_u32 s50, s50, s51
    s_add_u32 s50, s50, s49""")
    for st in range(2):
        for j in range(8): o(f"v_cvt_pk_bf16_f32 v{80+8*st+j}, v{32+16*st+2*j}, v{33+16*st+2*j}")
        for hh in range(2): o(f"ds_write_b128 v2, {r(80+8*st+4*hh,4)} offset:{st*32*144+16*hh}")
    o("s_waitcnt lgkmcnt(0)\ns_barrier")
    for i in range(4): o(f"ds_read_b128 {r(96+4*i,4)}, v5 offset:{i*8*144}")
    for i in range(4): o(f"s_waitcnt lgkmcnt({3-i})\nbuffer_store_dwordx4 {r(96+4*i,4)}, v3, s[28:31], s50 offen\ns_add_u32 s50, s50, 16384")
```

```python
import sys
from gen_common import *
from gen_k1 import k1
from gen_k2 import k2, K2_LDS
o = A(); ks = [k1(o), k2(o)]
hdr = f"""; MQA attention (32 heads sharing K/V) + GFNet spectral filter, two launches (generated by hand-written scripts)
; @launch kernel=k1_kernel grid=(256,1,1) block=(256,1,1) lds={6*US+16384}
; @launch kernel=k2_kernel grid=(256,1,1) block=(512,1,1) lds={K2_LDS}
.amdgcn_target "amdgcn-amd-amdhsa--gfx950"
.text
"""
F = dict(zip("TYQ23", os.environ.get("STF", "sc1,,,sc1,").split(",")))
cur = 0
for i, x in enumerate(o.l):
    if x.startswith("k") and x.endswith("_kernel:"): cur += 1
    if "buffer_store" in x and "v3, s[24:27], s50" not in x:
        c = "3" if "s[28:31]" in x and cur > 1 else str(cur) if cur > 1 else "Y" if ", v12," in x else "T" if any(t in x for t in (", v8,", "v192", "v[28:31]", "v[20:23]")) else "Q"
        if F[c]: o.l[i] = x + " " + F[c].replace("+", " ")
out = sys.argv[1] if len(sys.argv) > 1 else "concat_heads__grouped_kv_mqa__spectral_gfnet__prompt.s"
open(out, "w").write(hdr + o.text() + '.section .rodata,"a"\n' + "".join(desc(*k) for k in ks))
```

```python
from gen_common import *
EX = 131072
K2_LDS = 163840
UN = 4
PSW = int(os.environ.get("PSW", 48))
PF = int(os.environ.get("PF", 2))
TB2 = int(os.environ.get("TB2", 28))
ZP = int(os.environ.get("ZP", 0))
PRE = int(os.environ.get("PRE", 4)); EVERY = int(os.environ.get("EVERY", 8))
TB = int(os.environ.get("TB", 12)); G0 = (TB + 5)//4
S0, S1, OA, CC, P0, KB, VB, QR = 16, 32, 48, 64, 80, 96, 104, 120
def fft(o0, first):
    X, T64, TW1, TW2, T32, W, NS64, NS32, D = 16, 48, 64, 80, 96, 112, 128, 136, 144
    def mk(g, kv):
        def f(): o0(f"s_add_u32 s69, s68, {KF + kv*65536 + g*4096}"); dma(o0, 1, 24, "s69", 68, kv*65536 + g*4096)
        return f
    o = VM(o0, [mk(g, kv) for g in range(G0, 16) for kv in range(2)] if first else [], 0)
    if first:
        o(f"""v_and_b32 v2, 15, v0
        v_lshrrev_b32 v3, 4, v0
        v_lshlrev_b32 v5, 6, v2
        v_lshl_add_u32 v5, v3, 4, v5
        s_mul_i32 s50, s60, 12288
        s_add_u32 s50, s50, {TO}
        s_add_u32 s51, s50, 4096
        s_add_u32 s52, s50, 8192
        s_mov_b32 s53, {TO+49152}
        s_lshl_b32 s54, s60, 4
        v_add_u32 v7, s54, v2
        v_lshlrev_b32 v8, 5, v0""")
    o(f"""s_lshl_b32 s55, s61, 13
    s_lshl_b32 s56, s60, 11
    s_add_u32 s55, s55, s56
    s_add_u32 s56, s55, {WT}""")
    for p in range(2):
        for t in range(2):
            for ks in range(2): o.vm(f"buffer_load_dwordx4 {r(X+16*p+8*t+4*ks,4)}, v5, s[24:27], s{62+p} offen offset:{2048*ks+1024*t}", "X")
    def tab(b, s, tag):
        for j in range(4): o.vm(f"buffer_load_dwordx4 {r(b+4*j,4)}, v1, s[24:27], s{s} offen offset:{1024*j}", tag)
    if first:
        tab(T64, 50, "X")
        o("s_barrier\ns_setprio 2"); stamp(o0, 1)
        tab(TW1, 51, "T1"); tab(T32, 53, "T1")
    for j in range(2): o.vm(f"buffer_load_dwordx4 {r(W+8+4*j,4)}, v8, s[24:27], s56 offen offset:{16*j}", "W")
    if first:
        tab(TW2, 52, "T2")
        o(f"""v_mul_u32_u24 v9, 144, v2
        v_lshl_add_u32 v9, v3, 3, v9
        s_lshl_b32 s55, s60, 5
        s_add_u32 s55, s55, {EX}
        v_add_u32 v9, s55, v9
        v_lshrrev_b32 v10, 2, v2
        v_lshlrev_b32 v10, 3, v10
        v_and_b32 v11, 3, v2
        v_add_u32 v10, v10, v11
        v_mul_u32_u24 v10, 144, v10
        v_lshl_add_u32 v10, v3, 4, v10
        v_add_u32 v10, {EX}, v10
        v_lshlrev_b32 v11, 6, v7
        v_lshl_add_u32 v11, v3, 4, v11""")
        for _ in range(PRE): o.piece()
    else:
        o("v_add_u32 v9, 9216, v9\nv_add_u32 v10, 9216, v10"); o.tags["T1"] = o.tags["T2"] = o.tags["X"]
    o.wait("X"); o.every = EVERY
    if first:
        for j in range(8): o(f"v_xor_b32 v{NS64+j}, 0x80008000, v{T64+8+j}")
    R_, I_ = D, D+8
    def cplx(dr, di, steps, dataA):
        out = []
        for n, (xr, xi, C, Sr, Si) in enumerate(steps):
            f = (lambda d, x, k, c: mf16(d, x, k, c)) if dataA else (lambda d, x, k, c: mf16(d, k, x, c))
            out += [f(dr, xr, C, "0" if n == 0 else dr), f(di, xi, C, "0" if n == 0 else di), f(dr, xi, Sr, dr), f(di, xr, Si, di)]
        return out
    def inter(a, b):
        for x, y in zip(a, b): o(x); o(y)
    def cmul(c, s, sign, dst):
        for j in range(8): o(f"v_mul_f32 v{dst+j}, v{R_+j}, v{c(j)}\nv_mul_f32 v{dst+8+j}, v{I_+j}, v{c(j)}")
        for j in range(8):
            if sign > 0: o(f"v_fma_f32 v{dst+j}, -v{I_+j}, v{s(j)}, v{dst+j}\nv_fmac_f32 v{dst+8+j}, v{R_+j}, v{s(j)}")
            else: o(f"v_fmac_f32 v{dst+j}, v{I_+j}, v{s(j)}\nv_fma_f32 v{dst+8+j}, -v{R_+j}, v{s(j)}, v{dst+8+j}")
    def pack(src, dst):
        for j in range(8): o(f"v_cvt_pk_bf16_f32 v{dst+j}, v{src+2*j}, v{src+2*j+1}")
    o("s_nop 0")
    inter(*[cplx(R_+4*t, I_+4*t, [(X+8*t+4*k, X+16+8*t+4*k, T64+4*k, T64+8+4*k, NS64+4*k) for k in range(2)], True) for t in range(2)])
    o.wait("T1")
    if first:
        for j in range(8): o(f"v_xor_b32 v{NS32+j}, 0x80008000, v{T32+8+j}")
    else: o("s_nop 7")
    twc = lambda b: (lambda j: b + 8*(j >> 2) + (j & 3)); tws = lambda b: (lambda j: b + 8*(j >> 2) + 4 + (j & 3))
    cmul(twc(TW1), tws(TW1), -1, X); pack(X, X+16); o("s_nop 1")
    inter(*[cplx(R_+4*t, I_+4*t, [(X+16, X+20, T32+4*t, T32+8+4*t, NS32+4*t)], False) for t in range(2)])
    o.wait("W")
    for j in range(8): o(f"v_lshlrev_b32 v{W+j}, 16, v{W+8+j}\nv_and_b32 v{W+8+j}, 0xffff0000, v{W+8+j}")
    cmul(lambda j: W+j, lambda j: W+8+j, +1, X); pack(X, X+16); o("s_nop 1")
    inter(*[cplx(R_+4*t, I_+4*t, [(X+16, X+20, T32+4*t, NS32+4*t, T32+8+4*t)], True) for t in range(2)])
    o.wait("T2"); o("s_nop 7")
    cmul(twc(TW2), tws(TW2), +1, X); pack(X, X+16)
    for p in range(2):
        for t in range(2): o(f"ds_write_b64 v9, {r(X+16+4*p+2*t,2)} offset:{p*4608+t*16*144}")
    while o.pend: o.piece()
    o("s_waitcnt vmcnt(0) lgkmcnt(0)" if first else "s_waitcnt lgkmcnt(0)"); o("s_barrier")
    for t in range(2):
        for p in range(2):
            for ks in range(2): o(f"ds_read_b128 {r(X+16*p+8*t+4*ks,4)}, v10 offset:{p*4608+t*4*144+ks*64}")
    o("s_waitcnt lgkmcnt(0)")
    inter(*[cplx(R_+4*t, I_+4*t, [(X+8*t+4*k, X+16+8*t+4*k, T64+4*k, NS64+4*k, T64+8+4*k) for k in range(2)], True) for t in range(2)])
    o("s_nop 7")
    pack(D, W)
    for p in range(2): o(f"buffer_store_dwordx4 {r(W+4*p,4)}, v11, s[24:27], s{64+p} offen")

def k2(o):
    name = "k2_kernel"
    head(o, name, 256)
    o("s_waitcnt lgkmcnt(0)")
    srd(o, 24, 22, WS_N)
    o(f"""s_lshl_b32 s44, s40, 8
    s_lshl_b32 s45, s41, 3
    s_add_u32 s44, s44, s45
    s_add_u32 s44, s44, s3
    s_lshl_b32 s44, s44, 10
    v_lshlrev_b32 v1, 4, v0
    s_mov_b32 s46, 0xffff
    s_mov_b32 s47, 0xffff
    s_mov_b32 s48, 0
    s_mov_b32 s49, -1
    buffer_load_dwordx4 {r(12,4)}, v1, s[24:27], s44 offen
    s_and_b32 s68, s3, 3
    s_lshl_b32 s68, s68, 10
    s_cmp_lt_u32 s3, 4
    s_cbranch_scc1 .Lk2_fft
    s_setprio 3""")
    for g in range(G0):
        for kv in range(2):
            o(f"s_add_u32 s69, s68, {KF + kv*65536 + g*4096}"); dma(o, 1, 24, "s69", 68, kv*65536 + g*4096)
    o(f"""s_mov_b32 s49, {TB//UN}
    s_cmp_eq_u32 s2, 0
    s_cselect_b32 s70, {TB2//UN}, -1
    s_mov_b32 s67, {PSW//UN}
    s_waitcnt vmcnt(0)
    s_barrier
    s_setprio 1
    s_branch .Lk2_att
    .Lk2_fft:
    s_mov_b32 s67, 2
    s_mov_b32 s60, s3
    s_lshl_b32 s61, s40, 5
    s_add_u32 s61, s61, s41
    s_lshl_b32 s51, s61, 13
    s_add_u32 s62, s51, {YO}
    s_add_u32 s63, s51, {YO+4096}
    s_mul_i32 s51, s61, {2*ZS}
    s_add_u32 s64, s51, {ZO}
    s_add_u32 s65, s51, {ZO+ZS}
    s_cmp_eq_u32 s2, 0
    s_cselect_b32 s63, {WS_N}, s63
    s_cselect_b32 s65, {WS_N}, s65""")
    fft(o, True)
    o(f"""s_cmp_lg_u32 s2, 0
    s_cbranch_scc1 .Lk2_fd
    s_mov_b32 s61, 256
    s_mov_b32 s62, {YO+4096}
    s_mov_b32 s64, {ZO+ZS}""")
    fft(o, False)
    o(".Lk2_fd:")
    o("s_setprio 0\n.Lk2_att:"); stamp(o, 4)
    for j in range(4): o(f"v_mov_b32 v{QR+j}, v{12+j}")
    o("v_and_b32 v3, 27, v0\nv_mov_b32 v4, 0x3f803f80\nv_cmp_eq_u32 vcc, 16, v3\nv_cndmask_b32 v4, 0, v4, vcc")
    for j in range(16): o(f"v_mov_b32 v{CC+j}, 0\nv_mov_b32 v{VB+j}, v4")
    o("""v_lshrrev_b32 v3, 5, v0
    v_and_b32 v4, 15, v0
    v_lshlrev_b32 v3, 8, v3
    v_lshl_add_u32 v2, v4, 4, v3
    v_add_u32 v2, 0x10000, v2
    .Lk2_main:
    v_mov_b32 v10, v1
    v_mov_b32 v11, v2
    s_mov_b32 s53, 0""")
    if STAMP: o("s_memtime s[84:85]")
    o(f"ds_read_b128 {r(KB,4)}, v1\nds_read_b128 {r(KB+4,4)}, v1 offset:1024")
    for j in range(16): o(f"v_mov_b32 v{OA+j}, 0")
    for j in range(8): o(f"v_mov_b32 v{P0+8+j}, 0")
    o("s_waitcnt lgkmcnt(1)"); o(mf32(S0, KB, QR, CC)); o("s_waitcnt lgkmcnt(0)\ns_nop 10\n.Lk2_loop:")
    o(f"s_cmp_lg_u32 s53, s49\ns_cbranch_scc1 .Lk2_nb\ns_barrier\ns_mov_b32 s49, s70\ns_mov_b32 s70, -1"); stamp(o, 5); o(".Lk2_nb:\ns_cmp_lg_u32 s53, s67\ns_cbranch_scc1 .Lk2_np\ns_mov_b32 s67, -1\ns_cmp_ge_u32 s3, 4\ns_cbranch_scc1 .Lk2_pf")
    if ZP:
        o(f"""s_cmp_eq_u32 s53, 2
        s_cbranch_scc1 .Lk2_zs
        s_cmp_lg_u32 s53, {ZP}
        s_cbranch_scc1 .Lk2_zc
        v_and_b32 v131, 15, v0
        v_lshlrev_b32 v131, 9, v131
        s_mov_b32 s50, {FL + 256}
        buffer_load_dword v130, v131, s[24:27], s50 offen sc1
        s_mov_b32 s67, {ZP + 1}
        s_branch .Lk2_np
        .Lk2_zc:
        s_waitcnt vmcnt(0)
        v_cmp_gt_u32 s[50:51], 64, v130
        s_nop 4
        s_cmp_lg_u64 s[50:51], 0
        s_cbranch_scc1 .Lk2_np
        v_lshrrev_b32 v131, 1, v0
        v_mul_u32_u24 v131, {ZS}, v131
        v_and_b32 v130, 1, v0
        v_lshl_add_u32 v131, v130, 7, v131
        s_bfe_u32 s50, s41, 0x10003
        s_lshl_b32 s51, s40, 1
        s_add_u32 s50, s50, s51
        s_lshl_b32 s50, s50, 8
        s_mul_i32 s51, s3, {128*ZS}
        s_add_u32 s50, s50, s51
        s_add_u32 s50, s50, {ZO}""")
        for j in range(4): o(f"buffer_load_dword v{132+j}, v131, s[24:27], s50 offen\ns_add_u32 s50, s50, {32*ZS}")
        o(f"""s_branch .Lk2_np
        .Lk2_zs:
        s_cmp_ge_u32 s41, 16
        s_cselect_b32 s67, {ZP}, -1""")
    o(f"""s_and_b32 s50, s2, 15
    s_lshl_b32 s50, s50, 9
    s_add_u32 s50, s50, {FL + 256}
    v_mov_b32 v128, 1
    v_mov_b32 v129, 0
    s_waitcnt vmcnt(0)
    s_mov_b64 exec, 1
    buffer_atomic_add v128, v129, s[24:27], s50 offen sc1
    s_mov_b64 exec, -1
    s_branch .Lk2_np
    .Lk2_pf:
    s_setprio 0""")
    if PF:
        srd(o, 32, 12, 512*1024)
        o(f"s_lshl_b32 s50, s41, 14\ns_lshl_b32 s51, s68, 2\ns_add_u32 s50, s50, s51\ns_add_u32 s51, s50, {HO}")
        for j in range(4): o(f"buffer_load_dwordx4 {r(128+4*j,4)}, v1, s[32:35], s50 offen offset:{1024*j}")
        if PF > 1:
            for j in range(4): o(f"buffer_load_dwordx4 {r(144+4*j,4)}, v1, s[24:27], s51 offen offset:{1024*j}")
    o(".Lk2_np:")
    for T in range(UN):
        S, Sn, P, Pp = (S0, S1, P0, P0+8) if T % 2 == 0 else (S1, S0, P0+8, P0)
        o(mf32(Sn, KB+4*((T+1) & 1), QR, CC))
        o(f"ds_read_b128 {r(KB+4*(T&1),4)}, v10 offset:{(T+2)*1024}")
        o(f"s_mov_b64 exec, s[46:47]\nds_read_b128 {r(VB+8*(T&1),4)}, v11 offset:{T*1024}\nds_read_b128 {r(VB+8*(T&1)+4,4)}, v11 offset:{T*1024+512}\ns_mov_b64 exec, -1")
        va = []
        for j in range(8):
            va += [f"v_exp_f32 v{S+2*j}, v{S+2*j}", f"v_exp_f32 v{S+2*j+1}, v{S+2*j+1}"]
            if j > 0: va += [f"v_cvt_pk_bf16_f32 v{P+j-1}, v{S+2*j-2}, v{S+2*j-1}"]
        va += ["s_waitcnt lgkmcnt(0)", f"v_cvt_pk_bf16_f32 v{P+7}, v{S+14}, v{S+15}"]
        Vp = VB+8*((T-1) & 1)
        for i, x in enumerate(va):
            if i == 8: o(mf32(OA, Vp, Pp, OA))
            if i == 16: o(mf32(OA, Vp+4, Pp+4, OA))
            if i == 23 and T == UN-1: o(f"v_add_u32 v10, {UN*1024}, v10\nv_add_u32 v11, {UN*1024}, v11\ns_add_u32 s53, s53, 1\ns_cmp_lg_u32 s53, {64//UN}")
            o(x)
    o("s_cbranch_scc1 .Lk2_loop")
    if STAMP: o("s_memtime s[86:87]")
    stamp(o, 6); o("s_nop 1"); o(mf32(OA, VB+8, P0+8, OA)); o(mf32(OA, VB+12, P0+12, OA)); o("s_nop 11")
    o(f"""s_cmp_lg_u32 s48, 0
    s_cbranch_scc1 .Lk2_fin
    v_add_f32 v3, abs(v{OA}), abs(v{OA+1})""")
    for j in range(2, 8): o(f"v_add_f32 v3, v3, abs(v{OA+j})")
    o(f"""s_mov_b32 s50, {fl(2.0**-80)}
    s_mov_b32 s51, {fl(2.0**80)}
    s_mov_b32 s52, {fl(2.0**120)}
    v_cmp_nle_f32 s[54:55], s50, v{OA+8}
    v_cmp_nge_f32 s[56:57], s51, v{OA+8}
    v_cmp_nge_f32 s[58:59], s52, v3
    s_nop 3
    s_or_b64 s[54:55], s[54:55], s[56:57]
    s_or_b64 s[54:55], s[54:55], s[58:59]
    s_cbranch_scc0 .Lk2_fin
    s_mov_b32 s48, 1
    s_mov_b32 s50, 64
    v_mov_b32 v3, 0xff800000
    v_mov_b32 v4, v1
    .Lk2_mx:
    ds_read_b128 {r(KB,4)}, v4
    v_add_u32 v4, 1024, v4
    s_waitcnt lgkmcnt(0)""")
    o(mf32(S0, KB, QR, "0")); o("s_nop 11")
    for j in range(8): o(f"v_max3_f32 v3, v3, v{S0+2*j}, v{S0+2*j+1}")
    o(f"""s_sub_u32 s50, s50, 1
    s_cmp_lg_u32 s50, 0
    s_cbranch_scc1 .Lk2_mx
    v_xor_b32 v4, 32, v0
    v_lshlrev_b32 v4, 2, v4
    ds_bpermute_b32 v5, v4, v3
    s_waitcnt lgkmcnt(0)
    v_max_f32 v3, v3, v5""")
    for j in range(16): o(f"v_sub_f32 v{CC+j}, 0, v3")
    o(f"""s_branch .Lk2_main
    .Lk2_fin:
    s_waitcnt vmcnt(0)
    v_rcp_f32 v3, v{OA+8}
    s_add_u32 s44, s44, {OF}""")
    for j in range(8): o(f"v_mul_f32 v{OA+j}, v3, v{OA+j}")
    for j in range(4): o(f"v_cvt_pk_bf16_f32 v{4+j}, v{OA+2*j}, v{OA+2*j+1}")
    o("buffer_store_dwordx4 v[4:7], v1, s[24:27], s44 offen")
    from gen_k3 import k3f
    k3f(o, name)
    tail(o, name, 1)
    return name, 160
```

```python
from gen_common import *
from gen_k1 import wtr_addr, w_dma_addr
DS, WB = 16384, 6*16384
PU3 = int(os.environ.get("PU3", 6))
NB = int(os.environ.get("NB", 0))
def k3f(o, name):
    if NB:
        o(f"""s_cmp_lt_u32 s41, 16
        s_cbranch_scc1 .Lk3_nz
        v_and_b32 v8, 15, v0
        v_lshlrev_b32 v8, 9, v8
        s_mov_b32 s50, {FL + 256}
        buffer_load_dword v19, v8, s[24:27], s50 offen sc1
        .Lk3_nz:""")
    o("s_waitcnt vmcnt(0)\ns_barrier\ns_setprio 0"); stamp(o, 1)
    o(f"""s_cmp_lg_u32 s3, 0
    s_cbranch_scc1 .Lk3_na
    s_lshl_b32 s50, s40, 1
    s_lshr_b32 s51, s41, 4
    s_add_u32 s50, s50, s51
    s_lshl_b32 s50, s50, 12
    s_add_u32 s50, s50, {FL}
    v_mov_b32 v2, 1
    v_lshlrev_b32 v3, 9, v0
    s_mov_b64 exec, 0xff
    buffer_atomic_add v2, v3, s[24:27], s50 offen sc1
    s_mov_b64 exec, -1
    .Lk3_na:
    s_mov_b32 s71, s3
    s_and_b32 s3, s3, 3""")
    def sync(tag, wl, zrole):
        o(f"s_cmp_lt_u32 s71, 4\ns_cbranch_scc1 .Lk3_c{tag}")
        for f in wl: f()
        if NB == 2:
            for u in range(7): o(f"s_waitcnt vmcnt({2*(7-u)})\ns_barrier")
        o(f"""s_waitcnt vmcnt(0)
        s_barrier
        s_mov_b32 s3, s71
        s_branch .Lfin_{name}
        .Lk3_c{tag}:""")
        if not NB: o(f"s_cmp_lg_u32 s71, 0\ns_cbranch_scc1 .Lk3_b{tag}")
        elif zrole: o(f"v_cmp_gt_u32 vcc, 64, v19\ns_cbranch_vccz .Lk3_b{tag}")
        o(f"""s_mov_b32 s50, {FL + (256 if zrole else 0)}
        s_mov_b32 s51, 0x40000""")
        o("v_and_b32 v2, 15, v0\nv_lshlrev_b32 v2, 9, v2" if zrole else "s_lshl_b32 s52, s45, 3\ns_add_u32 s52, s52, s44\ns_lshl_b32 s52, s52, 9\nv_mov_b32 v2, s52")
        o(f""".Lk3_p{tag}:
        buffer_load_dword v3, v2, s[24:27], s50 offen sc1
        s_sub_u32 s51, s51, 1
        s_cbranch_scc1 .Lk3_b{tag}
        s_waitcnt vmcnt(0)
        v_cmp_gt_u32 vcc, {64 if zrole else 16}, v3
        s_cbranch_vccnz .Lk3_p{tag}
        .Lk3_b{tag}:
        s_waitcnt vmcnt(0)""")
        if not NB: o("s_barrier")
        stamp(o, 5)
    o("""s_lshr_b32 s45, s41, 3
    s_and_b32 s45, s45, 1
    s_lshl_b32 s46, s40, 1
    s_add_u32 s45, s45, s46
    s_and_b32 s44, s41, 7
    s_lshr_b32 s42, s3, 1
    s_and_b32 s43, s3, 1
    s_lshl_b32 s47, s3, 10
    v_lshlrev_b32 v9, 4, v0""")
    srd(o, 28, 20, 4*MB)
    o("s_cmp_ge_u32 s41, 16\ns_cbranch_scc1 .Lk3_z")
    def mm(F, c0): return mf32(32, F, F+4, "0" if c0 else 32) + "\n" + mf32(48, F, F+8, "0" if c0 else 48)
    srd(o, 32, 12, 512*1024)
    o("s_lshl_b32 s50, s45, 17\ns_add_u32 s50, s50, s47\nv_add_u32 v10, s50, v9")
    w_dma_addr(o, 11)
    def D(v, sd, g, l):
        def f(): o(f"s_mov_b32 s52, {g}"); dma(o, v, sd, "s52", 47, l)
        return f
    FB = lambda st, ks: 64 + 48*st + 12*ks
    mms = lambda u, st: [mm(FB(st, ks), u == 0 and ks == 0) for ks in range(4)]
    def issue(u): return [D(10, 24, OF + m*32768 + u*4096, u % 6*DS + m*4096) for m in range(4)]
    wtr_addr(o, 13, True, True)
    o("s_lshl_b32 s50, s42, 13\nv_add_u32 v14, s50, v9\ns_mov_b32 s49, 0")
    sync("o", [D(11, 32, u*65536 + m*32768, WB + u*8192 + m*4096) for u in range(8) for m in range(2)], False)
    for u in range(PU3):
        for f in issue(u): f()
    def reads(u, st):
        o(f"v_add_u32 v16, {u % 6*DS}, v14\nv_add_u32 v17, {WB + u*8192}, v13")
        return ["".join(f"ds_read_b64_tr_b16 {r(FB(st,ks)+2*e,2)}, v17 offset:{(16*ks+8*e)*128}\n" for e in range(2)) +
                f"ds_read_b128 {r(FB(st,ks)+4,4)}, v16 offset:{ks*1024}\nds_read_b128 {r(FB(st,ks)+8,4)}, v16 offset:{4096+ks*1024}\n" for ks in range(4)]
    ring2(o, issue, reads, mms, PU3, 0, 4, False)
    o("s_branch .Lk3_epi\n.Lk3_z:")
    o(f"""v_lshrrev_b32 v2, 4, v0
    v_lshlrev_b32 v3, 2, v2
    v_and_b32 v4, 15, v0
    v_xor_b32 v3, v3, v4
    v_lshlrev_b32 v3, 4, v3
    s_lshl_b32 s50, s3, 2
    v_add_u32 v2, s50, v2
    v_mul_u32_u24 v2, {ZS}, v2
    v_add_u32 v10, v2, v3
    s_lshl_b32 s50, s45, 8
    v_add_u32 v10, s50, v10
    s_lshl_b32 s50, s44, 16
    s_add_u32 s50, s50, s47
    v_add_u32 v11, s50, v9""")
    def issue(u): return [D(10, 24, ZO + (64*u + 16*m)*ZS, u % 6*DS + m*4096) for m in range(4)]
    def extra():
        o("""v_bfe_u32 v2, v0, 2, 2
        v_lshrrev_b32 v3, 5, v0
        v_lshl_add_u32 v3, v3, 3, v2
        v_lshlrev_b32 v3, 8, v3
        v_bfe_u32 v4, v0, 4, 1
        v_lshl_add_u32 v3, v4, 5, v3
        v_and_b32 v4, 3, v0
        v_lshl_add_u32 v3, v4, 3, v3
        s_lshl_b32 s50, s42, 1
        v_xor_b32 v4, s50, v2
        v_lshl_add_u32 v14, v4, 6, v3
        v_xor_b32 v15, 64, v14
        s_lshl_b32 s50, s43, 12
        v_add_u32 v13, s50, v9
        s_mov_b32 s49, 1024""")
    extra()
    sync("z", [D(11, 24, HO + m*32768 + u*4096, WB + u*8192 + m*4096) for u in range(8) for m in range(2)], True)
    for u in range(PU3):
        for f in issue(u): f()
    def reads(u, st):
        o(f"v_add_u32 v16, {u % 6*DS}, v14\nv_add_u32 v18, {u % 6*DS}, v15\nv_add_u32 v17, {WB + u*8192}, v13")
        return [f"ds_read_b128 {r(FB(st,ks),4)}, v17 offset:{ks*1024}\n" + "".join(f"ds_read_b64_tr_b16 {r(FB(st,ks)+4+4*s_+2*e,2)}, v{v} offset:{(16*ks+4*e)*256}\n" for s_, v in ((0, 16), (1, 18)) for e in range(2)) for ks in range(4)]
    ring2(o, issue, reads, mms, PU3, 0, 4, False)
    o(".Lk3_epi:"); stamp(o, 4)
    o(f"""v_and_b32 v2, 31, v0
    v_lshrrev_b32 v3, 5, v0
    v_mul_u32_u24 v2, 144, v2
    v_lshl_add_u32 v2, v3, 5, v2
    s_mul_i32 s50, s42, {64*144}
    s_lshl_b32 s51, s43, 6
    s_add_u32 s50, s50, s51
    s_add_u32 s50, s50, {2*DS}
    v_add_u32 v2, s50, v2
    v_lshrrev_b32 v3, 3, v0
    v_and_b32 v4, 7, v0
    v_lshlrev_b32 v4, 4, v4
    v_mul_u32_u24 v5, 144, v3
    s_mul_i32 s50, s3, {32*144}
    s_add_u32 s50, s50, {2*DS}
    v_add3_u32 v5, v5, v4, s50
    v_lshl_add_u32 v3, v3, 11, v4
    s_lshl_b32 s50, s45, 18
    s_lshl_b32 s51, s3, 16
    s_add_u32 s50, s50, s51
    s_lshl_b32 s51, s44, 7
    s_add_u32 s50, s50, s51
    s_add_u32 s50, s50, s49""")
    for st in range(2):
        for j in range(8): o(f"v_cvt_pk_bf16_f32 v{80+8*st+j}, v{32+16*st+2*j}, v{33+16*st+2*j}")
        for hh in range(2): o(f"ds_write_b128 v2, {r(80+8*st+4*hh,4)} offset:{st*32*144+16*hh}")
    o("s_waitcnt lgkmcnt(0)\ns_barrier")
    for i in range(4): o(f"ds_read_b128 {r(96+4*i,4)}, v5 offset:{i*8*144}")
    for i in range(4): o(f"s_waitcnt lgkmcnt({3-i})\nbuffer_store_dwordx4 {r(96+4*i,4)}, v3, s[28:31], s50 offen\ns_add_u32 s50, s50, 16384")
```
